```python
import torch

def _softmax(x, axis=-1):
    return torch.softmax(x, dim=axis)
def _gelu(x):
    return torch.nn.functional.gelu(x, approximate="tanh")
def _silu(x):
    return torch.nn.functional.silu(x)
def _sigmoid(x):
    return torch.sigmoid(x)
def _layernorm(x, axis=-1, eps=1e-5):
    m = x.mean(dim=axis, keepdim=True)
    v = x.var(dim=axis, keepdim=True, unbiased=False)
    return (x - m) / torch.sqrt(v + eps)
def _scatter_add(tgt, idx, src, axis=0):
    return tgt.clone().index_add_(axis, idx, src)
def _segment_sum(src, seg, n):
    out = torch.zeros((n,) + src.shape[1:], dtype=src.dtype)
    return out.index_add_(0, seg, src)
def _pad(x, pw):
    flat = tuple(v for pair in reversed(pw) for v in pair)
    return torch.nn.functional.pad(x, flat)

kernel_name = 'sequential_preLN__linear_kernel_hedgehog__dense_activation_squared_relu__prompt'

def setup_inputs():

    _w = (lambda a: (lambda t: t.to(torch.bfloat16) if t.is_floating_point() else t)(torch.as_tensor(a)))
    def _A_setup():
        B, S, D, H = 1, 2048, 448, 16
        Dh = D // H
        return {
            "x": _w((lambda *s: torch.randn(*s, dtype=torch.bfloat16) * 0.05)(B, S, D)),
            "wqkv": _w((lambda *s: torch.randn(*s, dtype=torch.bfloat16) * 0.2)(D, 3 * D)),
            "w_phi": _w((lambda *s: torch.randn(*s, dtype=torch.bfloat16) * 0.2)(H, Dh, Dh) * (Dh ** -0.5)),
            "wo": _w((lambda *s: torch.randn(*s, dtype=torch.bfloat16) * 0.05)(D, D)),
        }
    _A_in = _A_setup()

    def _B_setup():
        B, S, D, F = 1, 2048, 448, 1792
        return {
            "x": _w((lambda *s: torch.randn(*s, dtype=torch.bfloat16) * 0.05)(B, S, D)),
            "w1": _w((lambda *s: torch.randn(*s, dtype=torch.bfloat16) * 0.05)(D, F)),
            "b1": _w((lambda *s: torch.randn(*s, dtype=torch.bfloat16) * 0.2)(F)),
            "w2": _w((lambda *s: torch.randn(*s, dtype=torch.bfloat16) * 0.05)(F, D)),
            "b2": _w((lambda *s: torch.randn(*s, dtype=torch.bfloat16) * 1.6)(D)),
        }
    _B_in = _B_setup()

    return {
        "A_x": _A_in["x"],
        "A_wqkv": _A_in["wqkv"],
        "A_w_phi": _A_in["w_phi"],
        "A_wo": _A_in["wo"],
        "B_x": _B_in["x"],
        "B_w1": _B_in["w1"],
        "B_b1": _B_in["b1"],
        "B_w2": _B_in["w2"],
        "B_b2": _B_in["b2"],
    }

def reference(A_x, A_wqkv, A_w_phi, A_wo, B_x, B_w1, B_b1, B_w2, B_b2):
    def _A_ref(x, wqkv, w_phi, wo):
        B, S, D = x.shape
        H = 16; Dh = D // H
        qkv = (lambda x, *d: x.permute(*d))((x @ wqkv).reshape(B, S, 3, H, Dh), 2, 0, 3, 1, 4)
        q, k, v = qkv[0], qkv[1], qkv[2]
        pq = torch.einsum("bhsd,hdf->bhsf", q, w_phi)
        pk = torch.einsum("bhsd,hdf->bhsf", k, w_phi)
        phi_q = torch.concatenate([_softmax(pq, axis=-1), _softmax(-pq, axis=-1)], axis=-1)
        phi_k = torch.concatenate([_softmax(pk, axis=-1), _softmax(-pk, axis=-1)], axis=-1)
        kv = torch.einsum("bhsf,bhsd->bhfd", phi_k, v)
        z  = torch.einsum("bhsf->bhf", phi_k)
        num = torch.einsum("bhqf,bhfd->bhqd", phi_q, kv)
        den = torch.einsum("bhqf,bhf->bhq", phi_q, z)[..., None] + 1e-6
        o = num / den
        return (lambda x, *d: x.permute(*d))(o, 0, 2, 1, 3).reshape(B, S, D) @ wo

    def _B_ref(x, w1, b1, w2, b2):
        h = torch.einsum("bsd,df->bsf", x, w1) + b1
        zero = torch.zeros_like(h)
        r = torch.where(h > zero, h, zero)
        h = r * r
        out = torch.einsum("bsf,fd->bsd", h, w2) + b2
        return out

    x = A_x
    h = x + _A_ref(_layernorm(x, axis=-1), A_wqkv, A_w_phi, A_wo)
    h2 = h + _B_ref(_layernorm(h, axis=-1), B_w1, B_b1, B_w2, B_b2)
    return h2
```

```python
import re


def v(i, n=1):
    return f"v{i}" if n == 1 else f"v[{i}:{i + n - 1}]"


def a(i, n=1):
    return f"a{i}" if n == 1 else f"a[{i}:{i + n - 1}]"


def s(i, n=1):
    return f"s{i}" if n == 1 else f"s[{i}:{i + n - 1}]"


_REG = re.compile(r"^(-|abs\(|\|)?([vas])(?:(\d+)|\[(\d+):(\d+)\])\)?\|?$")
TRANS = ("v_exp_f32", "v_log_f32", "v_rcp_f32", "v_rsq_f32", "v_sqrt_f32", "v_sin_f32", "v_cos_f32")


def _regs(tok):
    tok = tok.strip()
    if tok == "vcc":
        return {("s", "vcc")}
    if tok == "exec":
        return {("s", "exec")}
    if tok == "m0":
        return {("s", "m0")}
    m = _REG.match(tok)
    if not m:
        return set()
    kind = m.group(2)
    if m.group(3) is not None:
        lo = hi = int(m.group(3))
    else:
        lo, hi = int(m.group(4)), int(m.group(5))
    return {(kind, i) for i in range(lo, hi + 1)}


def _split_ops(rest):
    ops, depth, cur = [], 0, ""
    for ch in rest:
        if ch in "[(":
            depth += 1
        if ch in "])":
            depth -= 1
        if ch == "," and depth == 0:
            ops.append(cur.strip())
            cur = ""
        else:
            cur += ch
    if cur.strip():
        ops.append(cur.strip())
    out = []
    for o in ops:
        out.append(o.split()[0] if o.split() else o)
    return out, ops


class Ins:
    def __init__(self, text):
        self.text = text
        body = text.split(";")[0].strip()
        parts = body.split(None, 1)
        self.op = parts[0]
        rest = parts[1] if len(parts) > 1 else ""
        ops, raw = _split_ops(rest)
        self.ops = ops
        op = self.op
        self.mfma = op.startswith("v_mfma")
        self.valu = op.startswith("v_") and not self.mfma
        self.salu = op.startswith("s_")
        self.vmem = op.startswith(("buffer_", "global_", "flat_"))
        self.ds = op.startswith("ds_")
        self.trans = any(op.startswith(t) for t in TRANS)
        self.dot = op.startswith("v_dot")
        self.perml = op.startswith("v_permlane")
        self.dpp = "_dpp" in op or "quad_perm" in rest or "row_" in rest
        self.lds_dma = self.vmem and (bool(re.search(r"\blds\b", rest)) or "_lds_" in op)
        self.rd, self.wr = set(), set()
        self.srcc = set()
        self.srcab = set()
        self.passes = 0
        self.store_wide = False
        self.sdata = set()
        R = [_regs(o) for o in ops]
        if self.mfma:
            self.wr = R[0]
            self.srcab = R[1] | R[2]
            self.srcc = R[3]
            self.rd = self.srcab | self.srcc
            self.passes = 8 if "32x32" in op else 4
        elif self.valu:
            if op.startswith("v_cmp"):
                self.wr = R[0]
                self.rd = set().union(*R[1:])
            elif self.perml:
                self.wr = R[0] | R[1]
                self.rd = R[0] | R[1]
            elif op.startswith(("v_add_co", "v_sub_co", "v_addc_co", "v_subb_co")):
                self.wr = R[0] | R[1]
                self.rd = set().union(*R[2:])
            else:
                self.wr = R[0]
                self.rd = set().union(*R[1:]) if len(R) > 1 else set()
                if op.startswith(("v_fmac", "v_dot2c", "v_pk_fmac", "v_writelane")) or self.dpp:
                    self.rd |= R[0]
                if op.startswith("v_cndmask") and len(ops) == 3:
                    self.rd |= {("s", "vcc")}
        elif self.vmem:
            if op.startswith(("buffer_wbl2", "buffer_inv")):
                pass
            elif self.lds_dma:
                self.rd = set().union(*R) | {("s", "m0")}
            elif "_load" in op:
                self.wr = R[0]
                self.rd = set().union(*R[1:])
                if "d16" in op:
                    self.rd |= R[0]
            elif op.startswith("buffer_"):
                self.rd = set().union(*R)
                self.sdata = R[0]
                if "atomic" in op and re.search(r"\bsc0\b", rest):
                    self.wr = R[0]
            else:
                self.rd = set().union(*R)
                if "atomic" in op and re.search(r"\bsc0\b", rest):
                    self.wr = R[0]
                    self.rd = set().union(*R[1:])
                    self.sdata = R[2]
                else:
                    self.sdata = R[1]
            self.store_wide = ("store" in op) and op.endswith(("x3", "x4"))
        elif self.ds:
            if op.startswith(("ds_read", "ds_bpermute", "ds_permute", "ds_swizzle")) or "rtn" in op:
                self.wr = R[0]
                self.rd = set().union(*R[1:])
            else:
                self.rd = set().union(*R)
        elif self.salu:
            if op.startswith(("s_cmp", "s_cbranch", "s_branch", "s_waitcnt", "s_barrier", "s_nop",
                              "s_endpgm", "s_sleep", "s_setprio", "s_bitcmp", "s_setpc")):
                self.rd = set().union(*R) if R else set()
            else:
                self.wr = R[0] if R else set()
                self.rd = set().union(*R[1:]) if len(R) > 1 else set()
                if "saveexec" in op:
                    self.wr |= {("s", "exec")}

    def states(self):
        if self.op == "s_nop":
            return int(self.ops[0], 0) + 1
        return 1


def _vg(regs):
    return {r for r in regs if r[0] in "va"}


def _sg(regs):
    return {r for r in regs if r[0] == "s"}


def need(p, c):
    n = 0
    if p.valu:
        w = _vg(p.wr)
        if w:
            if c.mfma and w & c.rd:
                n = max(n, 2)
            if c.perml and w & c.rd:
                n = max(n, 2)
            if c.dpp and w & c.rd:
                n = max(n, 2)
            if c.op.startswith(("v_readlane", "v_readfirstlane")) and w & c.rd:
                n = max(n, 1)
            if p.trans and w & c.rd and not c.trans:
                n = max(n, 1)
            if p.dot and w & (c.rd | c.wr):
                same_acc = c.op == p.op and not (w & set().union(*[_regs(o) for o in c.ops[1:3]]))
                if not same_acc:
                    n = max(n, 3)
            if ("sdwa" in p.op or "op_sel:" in p.text) and w & (c.rd | c.wr):
                n = max(n, 1)
        sw = _sg(p.wr)
        if sw:
            if (c.valu or c.mfma) and sw & c.rd:
                n = max(n, 4 if c.op.startswith(("v_readlane", "v_writelane")) else 2)
            if c.vmem and sw & c.rd:
                n = max(n, 5)
            if c.salu and sw & c.rd:
                n = max(n, 1)
    if p.mfma:
        d = p.wr
        big = {4: 8, 8: 12}[p.passes]
        if c.mfma:
            if d & c.srcab:
                n = max(n, big)
            if d & c.srcc:
                if not (c.srcc == d and c.op == p.op):
                    n = max(n, {4: 6, 8: 10}[p.passes])
            elif d & c.wr:
                n = max(n, big)
        elif d & (c.rd | c.wr):
            n = max(n, big)
        if p.srcc and not c.mfma and (p.srcc & c.wr):
            n = max(n, {4: 3, 8: 7}[p.passes])
    if p.salu and ("s", "m0") in p.wr and c.lds_dma:
        n = max(n, 1)
    if p.store_wide and p.sdata & c.wr:
        n = max(n, 2 if c.valu else 1)
    return n


class Kernel:
    def __init__(self, name):
        self.name = name
        self.items = []
        self.maxv = 0
        self.maxa = -1
        self.maxs = 0

    def e(self, text):
        for line in text.split("\n"):
            line = line.strip()
            if line:
                self.items.append(line)

    def c(self, text):
        self.items.append("; " + text)

    def label(self, name):
        self.items.append(name + ":")

    def finish(self):
        out = []
        hist = []
        LOOK = 20

        def track(ins):
            for kind, i in ins.rd | ins.wr:
                if isinstance(i, int):
                    if kind == "v":
                        self.maxv = max(self.maxv, i + 1)
                    elif kind == "a":
                        self.maxa = max(self.maxa, i)
                    else:
                        self.maxs = max(self.maxs, i + 1)

        def drain():
            worst = 0
            dist = 0
            for p in reversed(hist):
                if p.mfma:
                    worst = max(worst, 12 - dist)
                elif p.valu:
                    worst = max(worst, 5 - dist)
                elif p.store_wide:
                    worst = max(worst, 2 - dist)
                elif p.salu and ("s", "m0") in p.wr:
                    worst = max(worst, 1 - dist)
                dist += p.states()
                if dist > LOOK:
                    break
            if worst > 0:
                out.append(f"    s_nop {worst - 1}")
            hist.clear()

        for it in self.items:
            if it.startswith(";"):
                out.append("    " + it)
                continue
            if it.endswith(":") or it.startswith("."):
                if it.endswith(":"):
                    drain()
                out.append(it)
                continue
            ins = Ins(it)
            track(ins)
            if ins.op.startswith(("s_cbranch", "s_branch", "s_call", "s_setpc")):
                drain()
                out.append("    " + it)
                continue
            dist = 0
            short = 0
            for p in reversed(hist):
                short = max(short, need(p, ins) - dist)
                dist += p.states()
                if dist > LOOK:
                    break
            while short > 0:
                k = min(short, 16)
                nop = Ins(f"s_nop {k - 1}")
                hist.append(nop)
                out.append(f"    s_nop {k - 1}")
                short -= k
            hist.append(ins)
            if len(hist) > 64:
                del hist[:32]
            out.append("    " + it)
        return out

    def text(self):
        body = self.finish()
        head = [f".globl {self.name}", ".p2align 8", f".type {self.name},@function", f"{self.name}:"]
        return "\n".join(head + body) + "\n"

    def descriptor(self, min_vgpr=0):
        nv = max(self.maxv, 1)
        acc = (nv + 3) // 4 * 4
        total = acc + self.maxa + 1 if self.maxa >= 0 else nv
        total = max(total, min_vgpr)
        return (
            f".p2align 6\n.amdhsa_kernel {self.name}\n"
            f"  .amdhsa_next_free_vgpr {total}\n"
            f"  .amdhsa_next_free_sgpr {max(self.maxs, 16)}\n"
            f"  .amdhsa_accum_offset {acc}\n"
            "  .amdhsa_group_segment_fixed_size 0\n"
            "  .amdhsa_kernarg_size 96\n"
            "  .amdhsa_user_sgpr_count 2\n"
            "  .amdhsa_user_sgpr_kernarg_segment_ptr 1\n"
            "  .amdhsa_system_sgpr_workgroup_id_x 1\n"
            ".end_amdhsa_kernel\n"
        )
```

```python
import sys
from asmlib import Kernel, v, a, s

NAME = "sequential_preLN__linear_kernel_hedgehog__dense_activation_squared_relu__prompt"

WS_PHIQ = 0x000000
WS_KVP = 0x400000
WS_O = 0x600000
WS_H = 0x800000
WS_H1 = 0xA00000
SZ_ACT = 2048 * 448 * 2
SZ_H1 = 2048 * 1792 * 2
LOG2E = 0x3FB8AA3B
MFMA32 = "v_mfma_f32_32x32x16_bf16"


def srd(k, d, base, size, off=0):
    if off:
        k.e(f"s_add_u32 {s(d)}, {s(base)}, {hex(off)}")
        k.e(f"s_addc_u32 {s(d + 1)}, {s(base + 1)}, 0")
    else:
        k.e(f"s_mov_b32 {s(d)}, {s(base)}")
        k.e(f"s_mov_b32 {s(d + 1)}, {s(base + 1)}")
    k.e(f"s_mov_b32 {s(d + 2)}, {hex(size)}")
    k.e(f"s_mov_b32 {s(d + 3)}, 0x20000")


def lane_wave(k, vlane, swave, vt):
    k.e(f"v_and_b32 {v(vlane)}, 63, v0")
    k.e(f"v_lshrrev_b32 {v(vt)}, 6, v0")
    k.e(f"v_readfirstlane_b32 {s(swave)}, {v(vt)}")


def layernorm(k, X, n, T, sones, D=448):
    S0, S1, Q0, Q1 = T, T + 1, T + 2, T + 3
    for r in (S0, S1, Q0, Q1):
        k.e(f"v_mov_b32 {v(r)}, 0")
    for i in range(n):
        k.e(f"v_dot2c_f32_bf16 {v(S0 + (i & 1))}, {s(sones)}, {v(X + i)}")
        k.e(f"v_dot2c_f32_bf16 {v(Q0 + (i & 1))}, {v(X + i)}, {v(X + i)}")
    k.e(f"v_add_f32 {v(S0)}, {v(S0)}, {v(S1)}")
    k.e(f"v_add_f32 {v(Q0)}, {v(Q0)}, {v(Q1)}")
    k.e(f"v_permlane32_swap_b32 {v(S0)}, {v(Q0)}")
    k.e(f"v_add_f32 {v(S0)}, {v(S0)}, {v(Q0)}")
    k.e(f"v_mov_b32 {v(Q0)}, {v(S0)}")
    k.e(f"v_permlane32_swap_b32 {v(S0)}, {v(Q0)}")
    inv = 1.0 / D
    import struct
    invb = hex(struct.unpack("<I", struct.pack("<f", inv))[0])
    epsb = hex(struct.unpack("<I", struct.pack("<f", 1e-5))[0])
    k.e(f"v_mul_f32 {v(S0)}, {invb}, {v(S0)}")
    k.e(f"v_mul_f32 {v(Q0)}, {invb}, {v(Q0)}")
    k.e(f"v_fma_f32 {v(Q0)}, -{v(S0)}, {v(S0)}, {v(Q0)}")
    k.e(f"v_max_f32 {v(Q0)}, 0, {v(Q0)}")
    k.e(f"v_add_f32 {v(Q0)}, {epsb}, {v(Q0)}")
    k.e(f"v_rsq_f32 {v(Q0)}, {v(Q0)}")
    k.e(f"v_mul_f32 {v(S0)}, {v(S0)}, {v(Q0)}")
    k.e(f"v_sub_f32 {v(S0)}, 0, {v(S0)}")
    P = T + 4
    for i0 in range(0, n, 4):
        for j in range(4):
            k.e(f"v_lshlrev_b32 {v(P + 2 * j)}, 16, {v(X + i0 + j)}")
            k.e(f"v_and_b32 {v(P + 2 * j + 1)}, 0xffff0000, {v(X + i0 + j)}")
        for j in range(4):
            k.e(f"v_pk_fma_f32 {v(P + 2 * j, 2)}, {v(P + 2 * j, 2)}, {v(Q0, 2)}, {v(S0, 2)} op_sel_hi:[1,0,0]")
        for j in range(4):
            k.e(f"v_cvt_pk_bf16_f32 {v(X + i0 + j)}, {v(P + 2 * j)}, {v(P + 2 * j + 1)}")


def softmax_pair(k, P, EP, EN, OP, ON, T, sL, sNL):
    A, B = T, T + 2
    k.e(f"v_max3_f32 {v(A)}, {v(P)}, {v(P + 1)}, {v(P + 2)}")
    k.e(f"v_min3_f32 {v(B)}, {v(P)}, {v(P + 1)}, {v(P + 2)}")
    for i in range(3, 13, 2):
        k.e(f"v_max3_f32 {v(A)}, {v(A)}, {v(P + i)}, {v(P + i + 1)}")
        k.e(f"v_min3_f32 {v(B)}, {v(B)}, {v(P + i)}, {v(P + i + 1)}")
    k.e(f"v_max_f32 {v(A)}, {v(A)}, {v(P + 13)}")
    k.e(f"v_min_f32 {v(B)}, {v(B)}, {v(P + 13)}")
    k.e(f"v_mul_f32 {v(A)}, {s(sL)}, {v(A)}")
    k.e(f"v_mul_f32 {v(B)}, {s(sNL)}, {v(B)}")
    k.e(f"v_permlane32_swap_b32 {v(A)}, {v(B)}")
    k.e(f"v_max_f32 {v(A)}, {v(A)}, {v(B)}")
    k.e(f"v_mov_b32 {v(B)}, {v(A)}")
    k.e(f"v_permlane32_swap_b32 {v(A)}, {v(B)}")
    for i in range(0, 14, 2):
        k.e(f"v_pk_fma_f32 {v(EP + i, 2)}, {v(P + i, 2)}, {s(sL, 2)}, {v(A, 2)} op_sel_hi:[1,1,0] neg_lo:[0,0,1] neg_hi:[0,0,1]")
        k.e(f"v_pk_fma_f32 {v(EN + i, 2)}, {v(P + i, 2)}, {s(sL, 2)}, {v(B, 2)} op_sel_hi:[1,1,0] neg_lo:[1,0,1] neg_hi:[1,0,1]")
    for i in range(14):
        k.e(f"v_exp_f32 {v(EP + i)}, {v(EP + i)}")
        k.e(f"v_exp_f32 {v(EN + i)}, {v(EN + i)}")
    k.e(f"v_pk_add_f32 {v(A, 2)}, {v(EP, 2)}, {v(EP + 2, 2)}")
    k.e(f"v_pk_add_f32 {v(B, 2)}, {v(EN, 2)}, {v(EN + 2, 2)}")
    for i in range(4, 14, 2):
        k.e(f"v_pk_add_f32 {v(A, 2)}, {v(A, 2)}, {v(EP + i, 2)}")
        k.e(f"v_pk_add_f32 {v(B, 2)}, {v(B, 2)}, {v(EN + i, 2)}")
    k.e(f"v_add_f32 {v(A)}, {v(A)}, {v(A + 1)}")
    k.e(f"v_add_f32 {v(B)}, {v(B)}, {v(B + 1)}")
    k.e(f"v_permlane32_swap_b32 {v(A)}, {v(B)}")
    k.e(f"v_add_f32 {v(A)}, {v(A)}, {v(B)}")
    k.e(f"v_rcp_f32 {v(A)}, {v(A)}")
    k.e(f"v_mov_b32 {v(B)}, {v(A)}")
    k.e(f"v_permlane32_swap_b32 {v(A)}, {v(B)}")
    for i in range(0, 14, 2):
        k.e(f"v_pk_mul_f32 {v(EP + i, 2)}, {v(EP + i, 2)}, {v(A, 2)} op_sel_hi:[1,0]")
        k.e(f"v_pk_mul_f32 {v(EN + i, 2)}, {v(EN + i, 2)}, {v(B, 2)} op_sel_hi:[1,0]")
    for i in range(7):
        k.e(f"v_cvt_pk_bf16_f32 {v(OP + i)}, {v(EP + 2 * i)}, {v(EP + 2 * i + 1)}")
        k.e(f"v_cvt_pk_bf16_f32 {v(ON + i)}, {v(EN + 2 * i)}, {v(EN + 2 * i + 1)}")
    k.e(f"v_mov_b32 {v(OP + 7)}, 0")
    k.e(f"v_mov_b32 {v(ON + 7)}, 0")


def tr_lane_parts(k, vlane, vr, vcol, vhf, vt):
    k.e(f"v_bfe_u32 {v(vr)}, {v(vlane)}, 2, 2")
    k.e(f"v_bfe_u32 {v(vt)}, {v(vlane)}, 4, 1")
    k.e(f"v_lshlrev_b32 {v(vcol)}, 5, {v(vt)}")
    k.e(f"v_and_b32 {v(vt)}, 3, {v(vlane)}")
    k.e(f"v_lshl_add_u32 {v(vcol)}, {v(vt)}, 3, {v(vcol)}")
    k.e(f"v_lshrrev_b32 {v(vhf)}, 5, {v(vlane)}")


K1_W = 0
K1_WPHI = 86016
K1_PHI = K1_WPHI + 2048
K1_RED = K1_PHI + 16384
K1_LDS = K1_RED + 32768


def k1():
    k = Kernel("k1_kernel")
    k.e("s_cmp_ge_u32 s2, 256")
    k.e("s_cbranch_scc1 L_k1_end")
    k.e("s_load_dwordx4 s[4:7], s[0:1], 0")
    k.e("s_load_dwordx2 s[28:29], s[0:1], 16")
    k.e("s_load_dwordx2 s[30:31], s[0:1], 88")
    sTB, sH, sWV, sTT = 34, 35, 37, 38
    k.e("s_and_b32 s32, s2, 7")
    k.e("s_lshr_b32 s33, s2, 3")
    k.e("s_lshr_b32 s34, s32, 1")
    k.e("s_lshl_b32 s34, s34, 2")
    k.e("s_and_b32 s35, s33, 3")
    k.e("s_add_u32 s34, s34, s35")
    k.e("s_and_b32 s35, s32, 1")
    k.e("s_lshl_b32 s35, s35, 3")
    k.e("s_lshr_b32 s36, s33, 2")
    k.e("s_add_u32 s35, s35, s36")
    LANE, VT, VX, VW, VR, VCOL, VHF, VS = 1, 2, 3, 4, 5, 6, 7, 8
    lane_wave(k, LANE, sWV, VT)
    tr_lane_parts(k, LANE, VR, VCOL, VHF, VT)
    k.e(f"v_and_b32 {v(VS)}, 31, {v(LANE)}")
    k.e(f"v_mul_u32_u24 {v(VX)}, 896, {v(VS)}")
    k.e(f"v_lshl_add_u32 {v(VX)}, {v(VHF)}, 4, {v(VX)}")
    k.e(f"v_lshrrev_b32 {v(VT)}, 2, {v(LANE)}")
    k.e(f"v_mul_u32_u24 {v(VW)}, 2688, {v(VT)}")
    k.e(f"v_and_b32 {v(VT)}, 3, {v(LANE)}")
    k.e(f"v_lshl_add_u32 {v(VW)}, {v(VT)}, 4, {v(VW)}")
    k.e(f"s_lshl_b32 {s(sTT)}, {s(sTB)}, 2")
    k.e(f"s_add_u32 {s(sTT)}, {s(sTT)}, {s(sWV)}")
    k.e(f"s_mul_i32 s39, {s(sTT)}, 28672")
    k.e("s_waitcnt lgkmcnt(0)")
    srd(k, 8, 4, SZ_ACT)
    srd(k, 12, 6, 448 * 2688)
    k.e(f"s_mul_i32 s40, {s(sH)}, 1568")
    k.e("s_add_u32 s16, s28, s40")
    k.e("s_addc_u32 s17, s29, 0")
    k.e("s_mov_b32 s18, 1568")
    k.e("s_mov_b32 s19, 0x20000")
    srd(k, 20, 30, 0x400000, WS_PHIQ)
    srd(k, 24, 30, 0x200000, WS_KVP)
    X = 16
    for st in range(28):
        k.e(f"buffer_load_dwordx4 {v(X + 4 * st, 4)}, {v(VX)}, s[8:11], s39 offen offset:{32 * st}")
    PH0, PH1, VP = 10, 11, 9
    k.e(f"v_and_b32 {v(VT)}, 15, v0")
    k.e(f"v_lshrrev_b32 {v(VP)}, 4, v0")
    k.e(f"v_mul_u32_u24 {v(VP)}, 56, {v(VP)}")
    k.e(f"v_lshl_add_u32 {v(VP)}, {v(VT)}, 2, {v(VP)}")
    k.e(f"v_cmp_eq_u32 vcc, 14, {v(VT)}")
    k.e(f"v_subrev_u32 {v(PH0)}, 4, {v(VP)}")
    k.e(f"v_cndmask_b32 {v(VP)}, {v(VP)}, {v(PH0)}, vcc")
    k.e(f"v_and_b32 {v(VT)}, 13, {v(VT)}")
    k.e(f"v_cmp_eq_u32 vcc, 13, {v(VT)}")
    k.e(f"v_mov_b32 {v(PH0)}, 0x40000000")
    k.e(f"v_cndmask_b32 {v(VP)}, {v(VP)}, {v(PH0)}, vcc")
    k.e(f"buffer_load_dword {v(PH0)}, {v(VP)}, s[16:19], 0 offen")
    k.e(f"buffer_load_dword {v(PH1)}, {v(VP)}, s[16:19], 0 offen offset:896")
    k.e(f"s_mul_i32 s40, {s(sH)}, 56")
    k.e("s_and_b32 s40, s40, 0xfffffff0")
    k.e(f"s_mul_i32 s41, {s(sWV)}, 43008")
    k.e("s_add_u32 s40, s40, s41")
    k.e(f"s_lshl_b32 s41, {s(sWV)}, 10")
    for i in range(7):
        for mat in range(3):
            k.e(f"s_add_u32 s42, s40, {i * 172032 + mat * 896}")
            k.e(f"s_add_u32 m0, s41, {K1_W + mat * 28672 + i * 4096}")
            k.e(f"buffer_load_dwordx4 {v(VW)}, s[12:15], s42 offen lds")
    k.e("s_mov_b32 s44, 0x3f803f80")
    k.e(f"s_mov_b32 s46, {hex(LOG2E)}")
    k.e(f"s_mov_b32 s47, {hex(LOG2E)}")
    k.e(f"s_mov_b32 s45, {hex(LOG2E | 0x80000000)}")
    AW = [12, 13, 14]
    k.e(f"v_lshl_add_u32 {v(VT)}, {v(VHF)}, 3, {v(VR)}")
    k.e(f"v_lshl_add_u32 {v(AW[0])}, {v(VT)}, 6, {v(VCOL)}")
    k.e(f"s_and_b32 s43, {s(sH)}, 1")
    k.e("s_lshl_b32 s43, s43, 3")
    k.e(f"v_add_u32 {v(AW[0])}, s43, {v(AW[0])}")
    k.e(f"v_add_u32 {v(AW[1])}, 28672, {v(AW[0])}")
    k.e(f"v_add_u32 {v(AW[2])}, 57344, {v(AW[0])}")
    k.e("s_waitcnt vmcnt(21)")
    k.e(f"v_lshlrev_b32 {v(VT)}, 2, v0")
    k.e(f"ds_write_b32 {v(VT)}, {v(PH0)} offset:0" if False else f"v_add_u32 {v(VT)}, {K1_WPHI}, {v(VT)}")
    k.e(f"ds_write_b32 {v(VT)}, {v(PH0)}")
    k.e(f"ds_write_b32 {v(VT)}, {v(PH1)} offset:1024")
    layernorm(k, X, 112, 208, 44)
    k.e("s_waitcnt vmcnt(0) lgkmcnt(0)")
    k.e("s_barrier")
    ACC = {0: 128, 1: 144, 2: 160}
    WF = 176

    def reads(st):
        for mat in range(3):
            for t in range(2):
                k.e(f"ds_read_b64_tr_b16 {v(WF + (st & 1) * 12 + mat * 4 + 2 * t, 2)}, {v(AW[mat])} offset:{st * 1024 + t * 256}")

    reads(0)
    for st in range(28):
        if st + 1 < 28:
            reads(st + 1)
            k.e("s_waitcnt lgkmcnt(6)")
        else:
            k.e("s_waitcnt lgkmcnt(0)")
        for mat in range(3):
            w = v(WF + (st & 1) * 12 + mat * 4, 4)
            x = v(X + 4 * st, 4)
            c = "0" if st == 0 else v(ACC[mat], 16)
            if mat < 2:
                k.e(f"{MFMA32} {v(ACC[mat], 16)}, {w}, {x}, {c}")
            else:
                k.e(f"{MFMA32} {v(ACC[mat], 16)}, {x}, {w}, {c}")
    WPF = 200
    AP = 15
    k.e(f"v_lshl_add_u32 {v(VT)}, {v(VHF)}, 2, {v(VR)}")
    k.e(f"v_lshl_add_u32 {v(AP)}, {v(VT)}, 6, {v(VCOL)}")
    k.e(f"v_add_u32 {v(AP)}, {K1_WPHI}, {v(AP)}")
    for m in range(2):
        for t in range(2):
            k.e(f"ds_read_b64_tr_b16 {v(WPF + 4 * m + 2 * t, 2)}, {v(AP)} offset:{m * 1024 + t * 512}")
    KB, QB, VB = 16, 24, 32
    P, EP, EN, OP, ON, T4 = 40, 56, 72, 88, 96, 104
    for i in range(8):
        k.e(f"v_cvt_pk_bf16_f32 {v(KB + i)}, {v(ACC[1] + 2 * i)}, {v(ACC[1] + 2 * i + 1)}")
    for i in range(8):
        k.e(f"v_cvt_pk_bf16_f32 {v(QB + i)}, {v(ACC[0] + 2 * i)}, {v(ACC[0] + 2 * i + 1)}")
    k.e("s_waitcnt lgkmcnt(0)")
    P2 = 112
    k.e(f"{MFMA32} {v(P, 16)}, {v(WPF, 4)}, {v(KB, 4)}, 0")
    k.e(f"{MFMA32} {v(P, 16)}, {v(WPF + 4, 4)}, {v(KB + 4, 4)}, {v(P, 16)}")
    k.e(f"{MFMA32} {v(P2, 16)}, {v(WPF, 4)}, {v(QB, 4)}, 0")
    k.e(f"{MFMA32} {v(P2, 16)}, {v(WPF + 4, 4)}, {v(QB + 4, 4)}, {v(P2, 16)}")
    for i in range(8):
        k.e(f"v_cvt_pk_bf16_f32 {v(VB + i)}, {v(ACC[2] + 2 * i)}, {v(ACC[2] + 2 * i + 1)}")
    k.e(f"v_cmp_eq_u32 vcc, 28, {v(VS)}")
    k.e(f"v_mov_b32 {v(VT)}, s44")
    for i in range(8):
        k.e(f"v_cndmask_b32 {v(VB + i)}, {v(VB + i)}, {v(VT)}, vcc")
    softmax_pair(k, P, EP, EN, OP, ON, T4, 46, 45)
    k.e(f"s_lshl_b32 s48, {s(sWV)}, 12")
    k.e(f"s_add_u32 s48, s48, {K1_PHI}")
    AG = [128, 129, 130, 131]
    k.e(f"v_lshlrev_b32 {v(VT)}, 6, {v(VS)}")
    k.e(f"v_lshl_add_u32 {v(VT)}, {v(VHF)}, 3, {v(VT)}")
    k.e(f"v_add_u32 {v(VT)}, s48, {v(VT)}")
    k.e(f"v_bfe_u32 {v(132)}, {v(VS)}, 1, 2")
    for g in range(4):
        k.e(f"v_xor_b32 {v(AG[g])}, {g}, {v(132)}")
        k.e(f"v_lshl_add_u32 {v(AG[g])}, {v(AG[g])}, 4, {v(VT)}")
    for g in range(4):
        k.e(f"ds_write_b64 {v(AG[g])}, {v(OP + 2 * g, 2)}")
        k.e(f"ds_write_b64 {v(AG[g])}, {v(ON + 2 * g, 2)} offset:2048")
    AT = 133
    k.e(f"v_lshl_add_u32 {v(134)}, {v(VHF)}, 2, {v(VR)}")
    k.e(f"v_lshrrev_b32 {v(135)}, 1, {v(134)}")
    k.e(f"v_lshrrev_b32 {v(136)}, 4, {v(VCOL)}")
    k.e(f"v_xor_b32 {v(135)}, {v(135)}, {v(136)}")
    k.e(f"v_and_b32 {v(136)}, 8, {v(VCOL)}")
    k.e(f"v_lshl_add_u32 {v(135)}, {v(135)}, 4, {v(136)}")
    k.e(f"v_lshl_add_u32 {v(AT)}, {v(134)}, 6, {v(135)}")
    k.e(f"v_add_u32 {v(AT)}, s48, {v(AT)}")
    k.e("s_waitcnt lgkmcnt(0)")
    PF = 176
    for T in range(2):
        for m in range(2):
            for t in range(2):
                k.e(f"ds_read_b64_tr_b16 {v(PF + (T * 2 + m) * 4 + 2 * t, 2)}, {v(AT)} offset:{T * 2048 + m * 1024 + t * 512}")
    KV = 144
    k.e("s_waitcnt lgkmcnt(0)")
    for T in range(2):
        k.e(f"{MFMA32} {v(KV + 16 * T, 16)}, {v(PF + T * 8, 4)}, {v(VB, 4)}, 0")
        k.e(f"{MFMA32} {v(KV + 16 * T, 16)}, {v(PF + T * 8 + 4, 4)}, {v(VB + 4, 4)}, {v(KV + 16 * T, 16)}")
    softmax_pair(k, P2, EP, EN, OP, ON, T4, 46, 45)
    k.e(f"v_lshlrev_b32 {v(VT)}, 4, {v(LANE)}")
    k.e(f"s_lshl_b32 s49, {s(sTT)}, 4")
    k.e(f"s_add_u32 s49, s49, {s(sH)}")
    k.e("s_lshl_b32 s49, s49, 12")
    for i, r in enumerate((OP, OP + 4, ON, ON + 4)):
        k.e(f"buffer_store_dwordx4 {v(r, 4)}, {v(VT)}, s[20:23], s49 offen offset:{1024 * i}")
    AR = 134
    k.e(f"s_lshl_b32 s50, {s(sWV)}, 13")
    k.e(f"s_add_u32 s50, s50, {K1_RED}")
    k.e(f"v_add_u32 {v(AR)}, s50, {v(VT)}")
    for q in range(8):
        k.e(f"ds_write_b128 {v(AR)}, {v(KV + 4 * q, 4)} offset:{1024 * q}")
    k.e("s_waitcnt lgkmcnt(0)")
    k.e("s_barrier")
    k.e(f"s_lshl_b32 s50, {s(sWV)}, 11")
    k.e(f"s_add_u32 s50, s50, {K1_RED}")
    k.e(f"v_add_u32 {v(AR)}, s50, {v(VT)}")
    RB = 16
    for w in range(4):
        for q in range(2):
            k.e(f"ds_read_b128 {v(RB + (w * 2 + q) * 4, 4)}, {v(AR)} offset:{w * 8192 + q * 1024}")
    k.e("s_waitcnt lgkmcnt(0)")
    for i in range(0, 8, 2):
        k.e(f"v_pk_add_f32 {v(RB + i, 2)}, {v(RB + i, 2)}, {v(RB + 8 + i, 2)}")
        k.e(f"v_pk_add_f32 {v(RB + 16 + i, 2)}, {v(RB + 16 + i, 2)}, {v(RB + 24 + i, 2)}")
    for i in range(0, 8, 2):
        k.e(f"v_pk_add_f32 {v(RB + i, 2)}, {v(RB + i, 2)}, {v(RB + 16 + i, 2)}")
    k.e(f"s_lshl_b32 s50, {s(sH)}, 4")
    k.e(f"s_add_u32 s50, s50, {s(sTB)}")
    k.e("s_lshl_b32 s50, s50, 13")
    k.e(f"s_lshl_b32 s51, {s(sWV)}, 11")
    k.e("s_add_u32 s50, s50, s51")
    k.e(f"buffer_store_dwordx4 {v(RB, 4)}, {v(VT)}, s[24:27], s50 offen")
    k.e(f"buffer_store_dwordx4 {v(RB + 4, 4)}, {v(VT)}, s[24:27], s50 offen offset:1024")
    k.label("L_k1_end")
    k.e("s_endpgm")
    return k


def k1b():
    k = Kernel("k1b_kernel")
    k.e("s_cmp_ge_u32 s2, 256")
    k.e("s_cbranch_scc1 L_k1b_end")
    k.e("s_load_dwordx2 s[30:31], s[0:1], 88")
    sTB, sH, sWV, sTT = 34, 35, 37, 38
    k.e("s_and_b32 s32, s2, 7")
    k.e("s_lshl_b32 s32, s32, 1")
    k.e("s_bfe_u32 s33, s2, 0x10003")
    k.e(f"s_add_u32 {s(sH)}, s32, s33")
    k.e(f"s_lshr_b32 {s(sTB)}, s2, 4")
    LANE, VT, VL16, VS, VHF, VA = 1, 2, 3, 4, 5, 6
    lane_wave(k, LANE, sWV, VT)
    k.e(f"v_lshlrev_b32 {v(VL16)}, 4, {v(LANE)}")
    k.e(f"v_and_b32 {v(VS)}, 31, {v(LANE)}")
    k.e(f"v_lshrrev_b32 {v(VHF)}, 5, {v(LANE)}")
    k.e(f"s_lshl_b32 {s(sTT)}, {s(sTB)}, 2")
    k.e(f"s_add_u32 {s(sTT)}, {s(sTT)}, {s(sWV)}")
    k.e("s_waitcnt lgkmcnt(0)")
    srd(k, 20, 30, 0x400000, WS_PHIQ)
    srd(k, 24, 30, 0x200000, WS_KVP)
    srd(k, 8, 30, SZ_ACT, WS_O)
    k.e(f"s_lshl_b32 s40, {s(sH)}, 17")
    k.e(f"s_lshl_b32 s41, {s(sWV)}, 11")
    k.e("s_add_u32 s40, s40, s41")
    PB = 32
    for tb in range(16):
        if tb:
            k.e("s_add_u32 s40, s40, 8192")
        k.e(f"buffer_load_dwordx4 {v(PB + tb * 8, 4)}, {v(VL16)}, s[24:27], s40 offen")
        k.e(f"buffer_load_dwordx4 {v(PB + tb * 8 + 4, 4)}, {v(VL16)}, s[24:27], s40 offen offset:1024")
    PQ = 16
    k.e(f"s_lshl_b32 s49, {s(sTT)}, 4")
    k.e(f"s_add_u32 s49, s49, {s(sH)}")
    k.e("s_lshl_b32 s49, s49, 12")
    for i in range(4):
        k.e(f"buffer_load_dwordx4 {v(PQ + 4 * i, 4)}, {v(VL16)}, s[20:23], s49 offen offset:{1024 * i}")
    k.e(f"s_mul_i32 s42, {s(sH)}, 7")
    k.e(f"v_add_u32 {v(VT)}, s42, {v(VHF)}")
    k.e(f"v_lshrrev_b32 {v(VA)}, 1, {v(VT)}")
    k.e(f"v_lshlrev_b32 {v(VA)}, 9, {v(VA)}")
    k.e(f"v_lshl_add_u32 {v(VA)}, {v(VS)}, 4, {v(VA)}")
    k.e(f"v_and_b32 {v(VT)}, 1, {v(VT)}")
    k.e(f"v_lshl_add_u32 {v(VA)}, {v(VT)}, 3, {v(VA)}")
    k.e(f"s_mul_i32 s43, {s(sTT)}, 28672")
    for tb in range(1, 16):
        k.e(f"s_waitcnt vmcnt({4 + 2 * (15 - tb)})")
        for i in range(0, 8, 2):
            k.e(f"v_pk_add_f32 {v(PB + i, 2)}, {v(PB + i, 2)}, {v(PB + tb * 8 + i, 2)}")
    for i in range(4):
        k.e(f"v_cvt_pk_bf16_f32 {v(8 + i)}, {v(PB + 2 * i)}, {v(PB + 2 * i + 1)}")
    k.e(f"s_lshl_b32 s41, {s(sWV)}, 10")
    k.e(f"v_add_u32 {v(VT)}, s41, {v(VL16)}")
    k.e(f"ds_write_b128 {v(VT)}, {v(8, 4)}")
    k.e("s_waitcnt lgkmcnt(0)")
    k.e("s_barrier")
    KF = 40
    for i in range(4):
        k.e(f"ds_read_b128 {v(KF + 4 * i, 4)}, {v(VL16)} offset:{1024 * i}")
    k.e("s_waitcnt vmcnt(0) lgkmcnt(0)")
    O = 64
    for i in range(4):
        k.e(f"{MFMA32} {v(O, 16)}, {v(KF + 4 * i, 4)}, {v(PQ + 4 * i, 4)}, {'0' if i == 0 else v(O, 16)}")
    k.e(f"v_mov_b32 {v(8)}, {v(O + 12)}")
    k.e(f"v_mov_b32 {v(10)}, {v(O + 12)}")
    k.e(f"v_permlane32_swap_b32 {v(8)}, {v(10)}")
    k.e(f"v_add_f32 {v(10)}, 0x358637bd, {v(10)}")
    k.e(f"v_rcp_f32 {v(10)}, {v(10)}")
    for i in range(0, 16, 2):
        k.e(f"v_pk_mul_f32 {v(O + i, 2)}, {v(O + i, 2)}, {v(10, 2)} op_sel_hi:[1,0]")
    OB = 80
    for i in range(8):
        k.e(f"v_cvt_pk_bf16_f32 {v(OB + i)}, {v(O + 2 * i)}, {v(O + 2 * i + 1)}")
    for q in range(3):
        k.e(f"buffer_store_dwordx2 {v(OB + 2 * q, 2)}, {v(VA)}, s[8:11], s43 offen offset:{512 * q}")
    k.e("s_mov_b64 exec, 0xffffffff")
    k.e(f"buffer_store_dwordx2 {v(OB + 6, 2)}, {v(VA)}, s[8:11], s43 offen offset:1536")
    k.label("L_k1b_end")
    k.e("s_endpgm")
    return k


def load_frags(k, X, vl16, srdn, sbase, stmp, n=28):
    for st in range(n):
        if st % 4 == 0:
            k.e(f"s_add_u32 {s(stmp)}, {s(sbase)}, {st * 1024}")
        k.e(f"buffer_load_dwordx4 {v(X + 4 * st, 4)}, {v(vl16)}, {s(srdn, 4)}, {s(stmp)} offen offset:{(st % 4) * 1024}")


K2_LDS = 28672


def k2():
    k = Kernel("k2_kernel")
    k.e("s_cmp_ge_u32 s2, 224")
    k.e("s_cbranch_scc1 L_k2_end")
    k.e("s_load_dwordx2 s[4:5], s[0:1], 0")
    k.e("s_load_dwordx2 s[6:7], s[0:1], 24")
    k.e("s_load_dwordx2 s[30:31], s[0:1], 88")
    sTB, sNB, sWV, sTT = 34, 35, 37, 38
    k.e("s_and_b32 s32, s2, 7")
    k.e("s_lshl_b32 s32, s32, 1")
    k.e("s_bfe_u32 s33, s2, 0x10003")
    k.e(f"s_add_u32 {s(sTB)}, s32, s33")
    k.e(f"s_lshr_b32 {s(sNB)}, s2, 4")
    LANE, VT, VL16, VS, VHF, VW, VR, VCOL, AW, VXR, VHO = 1, 2, 3, 4, 5, 6, 7, 8, 9, 10, 11
    lane_wave(k, LANE, sWV, VT)
    tr_lane_parts(k, LANE, VR, VCOL, VHF, VT)
    k.e(f"v_lshlrev_b32 {v(VL16)}, 4, {v(LANE)}")
    k.e(f"v_and_b32 {v(VS)}, 31, {v(LANE)}")
    k.e(f"v_lshrrev_b32 {v(VT)}, 2, {v(LANE)}")
    k.e(f"v_mul_u32_u24 {v(VW)}, 896, {v(VT)}")
    k.e(f"v_and_b32 {v(VT)}, 3, {v(LANE)}")
    k.e(f"v_lshl_add_u32 {v(VW)}, {v(VT)}, 4, {v(VW)}")
    k.e(f"s_lshl_b32 {s(sTT)}, {s(sTB)}, 2")
    k.e(f"s_add_u32 {s(sTT)}, {s(sTT)}, {s(sWV)}")
    k.e(f"s_mul_i32 s39, {s(sTT)}, 28672")
    k.e("s_waitcnt lgkmcnt(0)")
    srd(k, 8, 4, SZ_ACT)
    srd(k, 12, 6, 448 * 896)
    srd(k, 16, 30, SZ_ACT, WS_O)
    srd(k, 20, 30, SZ_ACT, WS_H)
    k.e(f"s_lshl_b32 s40, {s(sNB)}, 6")
    k.e(f"s_mul_i32 s41, {s(sWV)}, 14336")
    k.e("s_add_u32 s40, s40, s41")
    k.e(f"s_lshl_b32 s41, {s(sWV)}, 10")
    for i in range(7):
        k.e(f"s_add_u32 s42, s40, {i * 57344}")
        k.e(f"s_add_u32 m0, s41, {i * 4096}")
        k.e(f"buffer_load_dwordx4 {v(VW)}, s[12:15], s42 offen lds")
    X = 16
    load_frags(k, X, VL16, 16, 39, 42)
    XR = 128
    k.e(f"v_mul_u32_u24 {v(VXR)}, 896, {v(VS)}")
    k.e(f"v_lshl_add_u32 {v(VXR)}, {v(VHF)}, 3, {v(VXR)}")
    k.e(f"s_lshl_b32 s43, {s(sNB)}, 6")
    k.e("s_add_u32 s43, s43, s39")
    for q in range(4):
        k.e(f"buffer_load_dwordx2 {v(XR + 2 * q, 2)}, {v(VXR)}, s[8:11], s43 offen offset:{16 * q}")
    k.e(f"v_lshl_add_u32 {v(VT)}, {v(VHF)}, 3, {v(VR)}")
    k.e(f"v_lshl_add_u32 {v(AW)}, {v(VT)}, 6, {v(VCOL)}")
    k.e(f"v_lshlrev_b32 {v(VHO)}, 4, {v(VS)}")
    k.e(f"v_lshl_add_u32 {v(VHO)}, {v(VHF)}, 3, {v(VHO)}")
    k.e(f"s_lshl_b32 s44, {s(sNB)}, 11")
    k.e("s_add_u32 s44, s44, s39")
    k.e("s_waitcnt vmcnt(32)")
    k.e("s_barrier")
    ACC, WF = 136, 152

    def reads(st):
        for t in range(2):
            k.e(f"ds_read_b64_tr_b16 {v(WF + (st % 3) * 4 + 2 * t, 2)}, {v(AW)} offset:{st * 1024 + t * 256}")

    reads(0)
    reads(1)
    for st in range(28):
        if st + 2 < 28:
            reads(st + 2)
        lg = min(2, 27 - st) * 2
        k.e(f"s_waitcnt vmcnt({4 + 27 - st}) lgkmcnt({lg})")
        k.e(f"{MFMA32} {v(ACC, 16)}, {v(WF + (st % 3) * 4, 4)}, {v(X + 4 * st, 4)}, {'0' if st == 0 else v(ACC, 16)}")
    k.e("s_waitcnt vmcnt(0)")
    U = 16
    for i in range(8):
        k.e(f"v_lshlrev_b32 {v(U + 2 * i)}, 16, {v(XR + i)}")
        k.e(f"v_and_b32 {v(U + 2 * i + 1)}, 0xffff0000, {v(XR + i)}")
    for i in range(8):
        k.e(f"v_pk_add_f32 {v(U + 2 * i, 2)}, {v(U + 2 * i, 2)}, {v(ACC + 2 * i, 2)}")
    for i in range(8):
        k.e(f"v_cvt_pk_bf16_f32 {v(XR + i)}, {v(U + 2 * i)}, {v(U + 2 * i + 1)}")
    for q in range(4):
        k.e(f"buffer_store_dwordx2 {v(XR + 2 * q, 2)}, {v(VHO)}, s[20:23], s44 offen offset:{512 * q}")
    k.label("L_k2_end")
    k.e("s_endpgm")
    return k


K3_LDS = 114688


def k3():
    k = Kernel("k3_kernel")
    k.e("s_cmp_ge_u32 s2, 224")
    k.e("s_cbranch_scc1 L_k3_end")
    k.e("s_load_dwordx4 s[4:7], s[0:1], 40")
    k.e("s_load_dwordx2 s[30:31], s[0:1], 88")
    sTB, sFB, sWV, sTT = 34, 35, 37, 38
    k.e("s_and_b32 s32, s2, 7")
    k.e("s_lshr_b32 s33, s2, 3")
    k.e("s_lshr_b32 s34, s32, 1")
    k.e("s_lshl_b32 s34, s34, 2")
    k.e("s_and_b32 s35, s33, 3")
    k.e("s_add_u32 s34, s34, s35")
    k.e("s_and_b32 s35, s32, 1")
    k.e("s_mul_i32 s35, s35, 7")
    k.e("s_lshr_b32 s36, s33, 2")
    k.e("s_add_u32 s35, s35, s36")
    LANE, VT, VL16, VS, VHF, VW, VR, VCOL, AW0, AW1, VHO, VB = 1, 2, 3, 4, 5, 6, 7, 8, 9, 10, 11, 12
    lane_wave(k, LANE, sWV, VT)
    tr_lane_parts(k, LANE, VR, VCOL, VHF, VT)
    k.e(f"v_lshlrev_b32 {v(VL16)}, 4, {v(LANE)}")
    k.e(f"v_and_b32 {v(VS)}, 31, {v(LANE)}")
    k.e(f"v_mul_u32_u24 {v(VW)}, 3584, {v(VR)}")
    k.e(f"v_lshrrev_b32 {v(VT)}, 4, {v(LANE)}")
    k.e(f"v_lshl_add_u32 {v(VW)}, {v(VT)}, 6, {v(VW)}")
    k.e(f"v_and_b32 {v(VT)}, 3, {v(LANE)}")
    k.e(f"v_lshl_add_u32 {v(VW)}, {v(VT)}, 4, {v(VW)}")
    k.e(f"s_lshl_b32 {s(sTT)}, {s(sTB)}, 2")
    k.e(f"s_add_u32 {s(sTT)}, {s(sTT)}, {s(sWV)}")
    k.e(f"s_mul_i32 s39, {s(sTT)}, 28672")
    k.e("s_waitcnt lgkmcnt(0)")
    srd(k, 12, 4, 448 * 3584)
    srd(k, 8, 6, 3584)
    srd(k, 16, 30, SZ_ACT, WS_H)
    srd(k, 20, 30, SZ_H1, WS_H1)
    X = 16
    load_frags(k, X, VL16, 16, 39, 42)
    BF = 208
    k.e(f"v_lshlrev_b32 {v(VB)}, 1, {v(VS)}")
    k.e(f"v_lshl_add_u32 {v(VB)}, {v(VHF)}, 30, {v(VB)}")
    k.e(f"s_lshl_b32 s43, {s(sFB)}, 8")
    for t in range(4):
        k.e(f"buffer_load_ushort {v(BF + 4 * t)}, {v(VB)}, s[8:11], s43 offen offset:{64 * t}")
    k.e(f"s_lshl_b32 s40, {s(sFB)}, 8")
    k.e(f"s_mul_i32 s41, {s(sWV)}, 14336")
    k.e("s_add_u32 s40, s40, s41")
    k.e(f"s_lshl_b32 s41, {s(sWV)}, 10")
    for i in range(28):
        k.e(f"s_add_u32 s42, s40, {i * 57344}")
        k.e(f"s_add_u32 m0, s41, {i * 4096}")
        k.e(f"buffer_load_dwordx4 {v(VW)}, s[12:15], s42 offen lds")
    k.e("s_mov_b32 s44, 0x3f803f80")
    for t in range(4):
        for j in range(1, 4):
            k.e(f"v_mov_b32 {v(BF + 4 * t + j)}, 0")
    ONE = 224
    k.e(f"v_mov_b32 {v(ONE)}, 0x3f80")
    for j in range(1, 4):
        k.e(f"v_mov_b32 {v(ONE + j)}, 0")
    k.e(f"v_lshlrev_b32 {v(AW0)}, 11, {v(VHF)}")
    k.e(f"v_lshl_add_u32 {v(AW0)}, {v(VR)}, 6, {v(AW0)}")
    k.e(f"v_add_u32 {v(AW0)}, {v(AW0)}, {v(VCOL)}")
    k.e(f"v_add_u32 {v(AW1)}, 57344, {v(AW0)}")
    k.e(f"v_lshlrev_b32 {v(VHO)}, 4, {v(VS)}")
    k.e(f"v_lshl_add_u32 {v(VHO)}, {v(VHF)}, 3, {v(VHO)}")
    k.e("s_waitcnt vmcnt(32)")
    layernorm(k, X, 112, 228, 44)
    k.e("s_waitcnt vmcnt(0)")
    k.e("s_barrier")
    ACC, WF = 128, 192 - 16
    ACC = 128
    WF = [192, 240]

    def reads(st):
        base = AW0 if st < 14 else AW1
        for t in range(4):
            for tt in range(2):
                k.e(f"ds_read_b64_tr_b16 {v(WF[st & 1] + 4 * t + 2 * tt, 2)}, {v(base)} offset:{(st % 14) * 4096 + tt * 1024 + t * 256}")

    reads(0)
    for t in range(4):
        k.e(f"{MFMA32} {v(ACC + 16 * t, 16)}, {v(BF + 4 * t, 4)}, {v(ONE, 4)}, 0")
    for st in range(28):
        if st + 1 < 28:
            reads(st + 1)
            k.e("s_waitcnt lgkmcnt(8)")
        else:
            k.e("s_waitcnt lgkmcnt(0)")
        for t in range(4):
            k.e(f"{MFMA32} {v(ACC + 16 * t, 16)}, {v(WF[st & 1] + 4 * t, 4)}, {v(X + 4 * st, 4)}, {v(ACC + 16 * t, 16)}")
    k.e(f"s_mul_i32 s45, {s(sTT)}, 114688")
    k.e(f"s_lshl_b32 s46, {s(sFB)}, 13")
    k.e("s_add_u32 s45, s45, s46")
    for t in range(4):
        A = ACC + 16 * t
        for i in range(16):
            k.e(f"v_max_f32 {v(A + i)}, 0, {v(A + i)}")
        for i in range(0, 16, 2):
            k.e(f"v_pk_mul_f32 {v(A + i, 2)}, {v(A + i, 2)}, {v(A + i, 2)}")
        for i in range(8):
            k.e(f"v_cvt_pk_bf16_f32 {v(X + 8 * t + i)}, {v(A + 2 * i)}, {v(A + 2 * i + 1)}")
        if t == 2:
            k.e("s_add_u32 s45, s45, 4096")
        for q in range(4):
            k.e(f"buffer_store_dwordx2 {v(X + 8 * t + 2 * q, 2)}, {v(VHO)}, s[20:23], s45 offen offset:{((t & 1) * 4 + q) * 512}")
    k.label("L_k3_end")
    k.e("s_endpgm")
    return k


K4_RING = 15
K4_LDS = 4 * K4_RING * 2048


def k4():
    k = Kernel("k4_kernel")
    k.e("s_cmp_ge_u32 s2, 224")
    k.e("s_cbranch_scc1 L_k4_end")
    k.e("s_load_dwordx4 s[4:7], s[0:1], 56")
    k.e("s_load_dwordx2 s[28:29], s[0:1], 72")
    k.e("s_load_dwordx2 s[30:31], s[0:1], 88")
    sRB, sNB, sWV = 34, 35, 37
    k.e("s_and_b32 s32, s2, 7")
    k.e("s_lshr_b32 s33, s2, 3")
    k.e("s_lshl_b32 s34, s32, 2")
    k.e("s_and_b32 s35, s33, 3")
    k.e("s_add_u32 s34, s34, s35")
    k.e("s_lshr_b32 s35, s33, 2")
    LANE, VT, VL16, VS, VHF, VW, VR, VCOL, AW, VHO, VO, VB2 = 1, 2, 3, 4, 5, 6, 7, 8, 9, 10, 11, 12
    lane_wave(k, LANE, sWV, VT)
    tr_lane_parts(k, LANE, VR, VCOL, VHF, VT)
    k.e(f"v_lshlrev_b32 {v(VL16)}, 4, {v(LANE)}")
    k.e(f"v_and_b32 {v(VS)}, 31, {v(LANE)}")
    k.e(f"v_lshl_add_u32 {v(VT)}, {v(VHF)}, 2, {v(VR)}")
    k.e(f"v_mul_u32_u24 {v(VW)}, 896, {v(VT)}")
    k.e(f"v_lshl_add_u32 {v(VW)}, {v(VCOL)}, 1, {v(VW)}")
    k.e("s_waitcnt lgkmcnt(0)")
    srd(k, 12, 4, 1792 * 896)
    srd(k, 8, 6, 896)
    srd(k, 16, 30, SZ_H1, WS_H1)
    srd(k, 20, 30, SZ_ACT, WS_H)
    srd(k, 24, 28, SZ_ACT)
    k.e(f"s_mul_i32 s40, {s(sRB)}, 229376")
    k.e(f"s_mul_i32 s41, {s(sWV)}, 28672")
    k.e("s_add_u32 s40, s40, s41")
    k.e("s_add_u32 s41, s40, 114688")
    k.e(f"s_mul_i32 s42, {s(sWV)}, {448 * 896}")
    k.e(f"s_lshl_b32 s43, {s(sNB)}, 7")
    k.e("s_add_u32 s42, s42, s43")
    k.e(f"s_mul_i32 s43, {s(sWV)}, {K4_RING * 2048}")
    HF = 16
    R = K4_RING

    def issue(st):
        slot = st % R
        k.e(f"s_add_u32 s44, s42, {st * 16 * 896}")
        k.e(f"s_add_u32 m0, s43, {slot * 2048}")
        k.e(f"buffer_load_dwordx4 {v(VW)}, s[12:15], s44 offen lds")
        k.e(f"s_add_u32 s44, s42, {st * 16 * 896 + 8 * 896}")
        k.e(f"s_add_u32 m0, s43, {slot * 2048 + 1024}")
        k.e(f"buffer_load_dwordx4 {v(VW)}, s[12:15], s44 offen lds")
        k.e(f"s_add_u32 s44, s40, {st * 1024}")
        k.e(f"buffer_load_dwordx4 {v(HF + slot * 8, 4)}, {v(VL16)}, s[16:19], s44 offen")
        k.e(f"s_add_u32 s44, s41, {st * 1024}")
        k.e(f"buffer_load_dwordx4 {v(HF + slot * 8 + 4, 4)}, {v(VL16)}, s[16:19], s44 offen")

    for st in range(R):
        issue(st)
    k.e(f"v_lshlrev_b32 {v(AW)}, 10, {v(VHF)}")
    k.e(f"v_lshl_add_u32 {v(AW)}, {v(VR)}, 6, {v(AW)}")
    k.e(f"v_add_u32 {v(AW)}, {v(AW)}, {v(VCOL)}")
    k.e(f"v_add_u32 {v(AW)}, s43, {v(AW)}")
    ACC = HF + R * 8
    WF = [ACC + 64, ACC + 72]

    def reads(st):
        slot = st % R
        for t in range(2):
            for tt in range(2):
                k.e(f"ds_read_b64_tr_b16 {v(WF[st & 1] + 4 * t + 2 * tt, 2)}, {v(AW)} offset:{slot * 2048 + tt * 512 + t * 256}")

    issued = R

    def vm_for(st):
        return 4 * (issued - 1 - st)

    k.e(f"s_waitcnt vmcnt({vm_for(0)})")
    reads(0)
    for st in range(28):
        if st + 1 < 28:
            k.e(f"s_waitcnt vmcnt({vm_for(st + 1)})")
            reads(st + 1)
            k.e("s_waitcnt lgkmcnt(4)")
        else:
            k.e("s_waitcnt lgkmcnt(0)")
        slot = st % R
        for t in range(2):
            for u in range(2):
                acc = ACC + 16 * (2 * u + t)
                k.e(f"{MFMA32} {v(acc, 16)}, {v(WF[st & 1] + 4 * t, 4)}, {v(HF + slot * 8 + 4 * u, 4)}, {'0' if st == 0 else v(acc, 16)}")
        if issued < 28:
            issue(issued)
            issued += 1
    k.e(f"s_lshr_b32 s46, {s(sWV)}, 1")
    k.e(f"s_and_b32 s47, {s(sWV)}, 1")
    k.e(f"s_lshl_b32 s48, {s(sRB)}, 1")
    k.e("s_add_u32 s48, s48, s46")
    k.e("s_mul_i32 s48, s48, 28672")
    k.e(f"s_lshl_b32 s49, {s(sNB)}, 1")
    k.e("s_add_u32 s49, s49, s47")
    k.e("s_lshl_b32 s50, s49, 11")
    k.e("s_add_u32 s50, s50, s48")
    k.e("s_lshl_b32 s51, s49, 6")
    k.e("s_add_u32 s52, s51, s48")
    k.e(f"v_lshlrev_b32 {v(VHO)}, 4, {v(VS)}")
    k.e(f"v_lshl_add_u32 {v(VHO)}, {v(VHF)}, 3, {v(VHO)}")
    k.e(f"v_mul_u32_u24 {v(VO)}, 896, {v(VS)}")
    k.e(f"v_lshl_add_u32 {v(VO)}, {v(VHF)}, 3, {v(VO)}")
    k.e(f"v_lshlrev_b32 {v(VB2)}, 3, {v(VHF)}")
    HR, BR = 16, 24
    for q in range(4):
        k.e(f"buffer_load_dwordx2 {v(HR + 2 * q, 2)}, {v(VHO)}, s[20:23], s50 offen offset:{512 * q}")
        k.e(f"buffer_load_dwordx2 {v(BR + 2 * q, 2)}, {v(VB2)}, s[8:11], s51 offen offset:{16 * q}")
    k.e("s_barrier")
    k.e(f"s_lshl_b32 s53, {s(sWV)}, 12")
    k.e(f"v_add_u32 {v(VT)}, s53, {v(VL16)}")
    for tile in range(4):
        for q in range(4):
            k.e(f"ds_write_b128 {v(VT)}, {v(ACC + 16 * tile + 4 * q, 4)} offset:{tile * 16384 + q * 1024}")
    k.e("s_waitcnt lgkmcnt(0)")
    k.e("s_barrier")
    k.e(f"s_lshl_b32 s53, {s(sWV)}, 14")
    k.e(f"v_add_u32 {v(VT)}, s53, {v(VL16)}")
    RB = 32
    for w in range(4):
        for q in range(4):
            k.e(f"ds_read_b128 {v(RB + 16 * w + 4 * q, 4)}, {v(VT)} offset:{w * 4096 + q * 1024}")
    U = 96
    k.e("s_waitcnt vmcnt(0)")
    for i in range(8):
        k.e(f"v_lshlrev_b32 {v(U + 2 * i)}, 16, {v(HR + i)}")
        k.e(f"v_and_b32 {v(U + 2 * i + 1)}, 0xffff0000, {v(HR + i)}")
        k.e(f"v_lshlrev_b32 {v(U + 16 + 2 * i)}, 16, {v(BR + i)}")
        k.e(f"v_and_b32 {v(U + 16 + 2 * i + 1)}, 0xffff0000, {v(BR + i)}")
    k.e("s_waitcnt lgkmcnt(0)")
    for i in range(0, 16, 2):
        k.e(f"v_pk_add_f32 {v(RB + i, 2)}, {v(RB + i, 2)}, {v(RB + 16 + i, 2)}")
        k.e(f"v_pk_add_f32 {v(RB + 32 + i, 2)}, {v(RB + 32 + i, 2)}, {v(RB + 48 + i, 2)}")
    for i in range(0, 16, 2):
        k.e(f"v_pk_add_f32 {v(RB + i, 2)}, {v(RB + i, 2)}, {v(RB + 32 + i, 2)}")
    for i in range(0, 16, 2):
        k.e(f"v_pk_add_f32 {v(RB + i, 2)}, {v(RB + i, 2)}, {v(U + 16 + i, 2)}")
    for i in range(0, 16, 2):
        k.e(f"v_pk_add_f32 {v(RB + i, 2)}, {v(RB + i, 2)}, {v(U + i, 2)}")
    for i in range(8):
        k.e(f"v_cvt_pk_bf16_f32 {v(HR + i)}, {v(RB + 2 * i)}, {v(RB + 2 * i + 1)}")
    for q in range(4):
        k.e(f"buffer_store_dwordx2 {v(HR + 2 * q, 2)}, {v(VO)}, s[24:27], s52 offen offset:{16 * q}")
    k.label("L_k4_end")
    k.e("s_endpgm")
    return k


def build(path):
    ks = [(k1(), 256, K1_LDS), (k1b(), 256, 4096), (k2(), 224, K2_LDS), (k3(), 224, K3_LDS), (k4(), 224, K4_LDS)]
    ref = open(f"cdna_kernels/{NAME}.s.ref").read().split("\n")
    head = [l for l in ref if l.startswith(";") and "@launch" not in l and "Override launch" not in l
            and "grid=ceil" not in l]
    out = head[:]
    for k, g, lds in ks:
        out.append(f"; @launch kernel={k.name} grid=({g},1,1) block=(256,1,1) lds={lds}")
    out.append('.amdgcn_target "amdgcn-amd-amdhsa--gfx950"')
    out.append(".text")
    for k, _, _ in ks:
        out.append(k.text())
    out.append('.section .rodata,"a"')
    for k, _, _ in ks:
        out.append(k.descriptor())
    open(path, "w").write("\n".join(out))


if __name__ == "__main__":
    build(sys.argv[1] if len(sys.argv) > 1 else f"cdna_kernels/{NAME}.s")
```

```python
from asmlib import Kernel, v, a, s

LOG2E = 0x3FB8AA3B
M32 = "v_mfma_f32_32x32x16_bf16"
M16 = "v_mfma_f32_16x16x32_bf16"
TR = "ds_read_b64_tr_b16"


class MK(Kernel):
    def __init__(self, name, prof=False):
        super().__init__(name)
        self.prof = prof
        self.nvm = 0
        self.vmtag = {}
        self.nlg = 0
        self.lgtag = {}
        self.nstamp = 0
        self.stamp_names = []
        self.uid = 0
        self.skip = {"issued", "chunk1", "chunk2", "chunk4", "chunk5"}

    def vm(self, text, tag=None):
        self.e(text)
        self.nvm += 1
        if tag is not None:
            self.vmtag[tag] = self.nvm

    def lg(self, text, tag=None):
        self.e(text)
        self.nlg += 1
        if tag is not None:
            self.lgtag[tag] = self.nlg

    def wait(self, vm=None, lg=None):
        parts = []
        if vm is not None:
            n = 0 if vm == "all" else self.nvm - self.vmtag[vm]
            if n <= 63:
                parts.append(f"vmcnt({n})")
        if lg is not None:
            n = 0 if lg == "all" else self.nlg - self.lgtag[lg]
            parts.append(f"lgkmcnt({min(n, 15)})")
        if parts:
            self.e("s_waitcnt " + " ".join(parts))

    def lab(self, base):
        self.uid += 1
        return f"L_{base}_{self.uid}"

    STAMP0 = 72

    def stamp(self, name, real=False):
        if not self.prof or name in self.skip:
            return
        i = self.nstamp
        self.nstamp += 1
        self.stamp_names.append(name)
        self.e(f"{'s_memrealtime' if real else 's_memtime'} s[70:71]")
        self.e("s_waitcnt lgkmcnt(0)")
        self.e(f"s_mov_b32 {s(self.STAMP0 + i)}, s70")


def srd(k, d, base, size, off=0):
    if off:
        k.e(f"s_add_u32 {s(d)}, {s(base)}, {hex(off)}")
        k.e(f"s_addc_u32 {s(d + 1)}, {s(base + 1)}, 0")
    else:
        k.e(f"s_mov_b32 {s(d)}, {s(base)}")
        k.e(f"s_mov_b32 {s(d + 1)}, {s(base + 1)}")
    k.e(f"s_mov_b32 {s(d + 2)}, {size if isinstance(size, str) else hex(size)}")
    k.e(f"s_mov_b32 {s(d + 3)}, 0x20000")


def softmax_pair(k, P, EP, EN, OP, ON, T, SC, fill=None):
    hook = fill if fill else (lambda i: None)
    A, B = T, T + 2
    k.e(f"v_max3_f32 {v(A)}, {v(P)}, {v(P + 1)}, {v(P + 2)}")
    k.e(f"v_min3_f32 {v(B)}, {v(P)}, {v(P + 1)}, {v(P + 2)}")
    for i in range(3, 13, 2):
        k.e(f"v_max3_f32 {v(A)}, {v(A)}, {v(P + i)}, {v(P + i + 1)}")
        k.e(f"v_min3_f32 {v(B)}, {v(B)}, {v(P + i)}, {v(P + i + 1)}")
    k.e(f"v_max_f32 {v(A)}, {v(A)}, {v(P + 13)}")
    k.e(f"v_min_f32 {v(B)}, {v(B)}, {v(P + 13)}")
    k.e(f"v_mul_f32 {v(A)}, {v(SC)}, {v(A)}")
    k.e(f"v_mul_f32_e64 {v(B)}, -{v(SC)}, {v(B)}")
    k.e(f"v_permlane32_swap_b32 {v(A)}, {v(B)}")
    k.e(f"v_max_f32 {v(A)}, {v(A)}, {v(B)}")
    k.e(f"v_mov_b32 {v(B)}, {v(A)}")
    k.e(f"v_permlane32_swap_b32 {v(A)}, {v(B)}")
    hook(0)
    for i in range(0, 14, 2):
        k.e(f"v_pk_fma_f32 {v(EP + i, 2)}, {v(P + i, 2)}, {v(SC, 2)}, {v(A, 2)} op_sel_hi:[1,0,0] neg_lo:[0,0,1] neg_hi:[0,0,1]")
        k.e(f"v_pk_fma_f32 {v(EN + i, 2)}, {v(P + i, 2)}, {v(SC, 2)}, {v(B, 2)} op_sel_hi:[1,0,0] neg_lo:[1,0,1] neg_hi:[1,0,1]")
    hook(1)
    for i in range(14):
        k.e(f"v_exp_f32 {v(EP + i)}, {v(EP + i)}")
        k.e(f"v_exp_f32 {v(EN + i)}, {v(EN + i)}")
        hook(10 + i)
    k.e(f"v_pk_add_f32 {v(A, 2)}, {v(EP, 2)}, {v(EP + 2, 2)}")
    k.e(f"v_pk_add_f32 {v(B, 2)}, {v(EN, 2)}, {v(EN + 2, 2)}")
    for i in range(4, 14, 2):
        k.e(f"v_pk_add_f32 {v(A, 2)}, {v(A, 2)}, {v(EP + i, 2)}")
        k.e(f"v_pk_add_f32 {v(B, 2)}, {v(B, 2)}, {v(EN + i, 2)}")
    k.e(f"v_add_f32 {v(A)}, {v(A)}, {v(A + 1)}")
    k.e(f"v_add_f32 {v(B)}, {v(B)}, {v(B + 1)}")
    k.e(f"v_permlane32_swap_b32 {v(A)}, {v(B)}")
    k.e(f"v_add_f32 {v(A)}, {v(A)}, {v(B)}")
    k.e(f"v_rcp_f32 {v(A)}, {v(A)}")
    k.e(f"v_mov_b32 {v(B)}, {v(A)}")
    k.e(f"v_permlane32_swap_b32 {v(A)}, {v(B)}")
    hook(2)
    for i in range(0, 14, 2):
        k.e(f"v_pk_mul_f32 {v(EP + i, 2)}, {v(EP + i, 2)}, {v(A, 2)} op_sel_hi:[1,0]")
        k.e(f"v_pk_mul_f32 {v(EN + i, 2)}, {v(EN + i, 2)}, {v(B, 2)} op_sel_hi:[1,0]")
    for i in range(7):
        k.e(f"v_cvt_pk_bf16_f32 {v(OP + i)}, {v(EP + 2 * i)}, {v(EP + 2 * i + 1)}")
        k.e(f"v_cvt_pk_bf16_f32 {v(ON + i)}, {v(EN + 2 * i)}, {v(EN + 2 * i + 1)}")
    k.e(f"v_mov_b32 {v(OP + 7)}, 0")
    k.e(f"v_mov_b32 {v(ON + 7)}, 0")


def f32bits(x):
    import struct
    return hex(struct.unpack("<I", struct.pack("<f", x))[0])


def ln_stats(k, S0, S1, Q0, Q1, STD=None, D=448):
    k.e(f"v_add_f32 {v(S0)}, {v(S0)}, {v(S1)}")
    k.e(f"v_add_f32 {v(Q0)}, {v(Q0)}, {v(Q1)}")
    k.e(f"v_permlane32_swap_b32 {v(S0)}, {v(Q0)}")
    k.e(f"v_add_f32 {v(S0)}, {v(S0)}, {v(Q0)}")
    k.e(f"v_mov_b32 {v(Q0)}, {v(S0)}")
    k.e(f"v_permlane32_swap_b32 {v(S0)}, {v(Q0)}")
    k.e(f"v_mul_f32 {v(S0)}, {f32bits(-1.0 / D)}, {v(S0)}")
    k.e(f"v_mul_f32 {v(Q0)}, {f32bits(1.0 / D)}, {v(Q0)}")
    k.e(f"v_fma_f32 {v(Q0)}, -{v(S0)}, {v(S0)}, {v(Q0)}")
    k.e(f"v_max_f32 {v(Q0)}, 0, {v(Q0)}")
    k.e(f"v_add_f32 {v(Q1)}, {f32bits(1e-5)}, {v(Q0)}")
    k.e(f"v_rsq_f32 {v(Q0)}, {v(Q1)}")
    if STD is not None:
        k.e(f"v_mul_f32 {v(STD)}, {v(Q1)}, {v(Q0)}")
```

```python
import sys
from asmlib import v, a, s
from mklib import MK, srd, softmax_pair, ln_stats, f32bits, LOG2E, M32, M16, TR

NAME = "sequential_preLN__linear_kernel_hedgehog__dense_activation_squared_relu__prompt"

WS_KVP, WS_O, WS_H, WS_H1 = 0x000000, 0x100000, 0x300000, 0x500000
WS_F1, WS_F2, WS_F3, WS_F4 = 0xC00000, 0xC10000, 0xC20000, 0xC30000
WS_ST, WS_CA = 0xC80000, 0xCC0000
WS_SIZE = 0x1000000
WS_PROF = 0x2000000
SZ_ACT = 2048 * 448 * 2
POLL_MAX = 20000

XS = [57344, 73728, 90112, 16384, 114688, 131072, 0]
WA = [49152, 106496, 32768, 40960, 147456, 155648, 49152]
L_WQ, L_CS, L_PHI, L_V, L_KVF = 16384, 45056, 0, 49152, 114688
L_W1A, L_WO, L_W1B = 0, 57344, 57344
L_RS, L_STG, L_HRES, L_XCH = 114688, 118784, 151552, 0

P_X, P_WQKV, P_WPHI, P_WO, P_W1, P_B1, P_W2, P_B2, P_OUT, P_DBG, P_WS = 4, 6, 8, 10, 12, 14, 16, 18, 20, 22, 24
TAG = 26
R_X, R_W, R_C, R_WS, R_W2, R_M = 28, 32, 36, 40, 44, 48
sWV, sGA, sH, sG, sM = 52, 53, 54, 55, 56
sC = 57
sT0, sT1, sT2, sT3, sXB, sWB = 64, 65, 66, 67, 68, 69
sMK = 100
sRT, sCB, sUH, sTT0, sNB, sW2L, sSZ, sW2, sLNK = 3, 4, 5, 6, 7, 8, 9, 27, 62
RETRY_MAX = 8
OPT = dict(la=3, wphi_at=2, ack=0, stop=9, lim2=6, side_at=13, stats_at=18, d_fill=4, lp_at=14)

LANE, VT, VT2, VXE, VXO, VW, HF, T32, VL16 = 1, 2, 3, 4, 5, 6, 7, 8, 9
XR, WR, WC = 10, 14, 15
S0, S1, Q0, Q1, SC, RSTD = 16, 17, 18, 19, 20, 22
ONES, CORB, X = 24, 28, 32
ACK, ACV, WF = 144, 160, 176
PHR, WPF, XRES, PL, VPO, VZ, VTAG = 128, 232, 240, 248, 250, 251, 252
sF, sD = 68, 69
TRR, TRC = 254, 255
ACS_K, ACS_V = 224, 240
VW2A, VW2B, VFR = 21, 23, 0
VST, VTR = 4, 5
DPP = "row_mask:0xf bank_mask:0xf"
BIG = 0x40000000


def poll(k, soff, tag, voff, pl=PL, lim=0):
    top, done = k.lab("poll"), k.lab("pdone")
    k.wait(vm=tag)
    k.e(f"s_mov_b32 {s(sT3)}, {POLL_MAX}")
    k.label(top)
    k.e(f"v_cmp_ne_u32 vcc, {s(TAG)}, {v(pl)}")
    k.e(f"s_cbranch_vccz {done}")
    k.e(f"s_sub_u32 {s(sT3)}, {s(sT3)}, 1")
    k.e(f"s_cbranch_scc1 {done}")
    k.e(f"buffer_load_dwordx2 {v(pl, 2)}, {v(voff)}, {s(R_WS, 4)}, {s(soff)} offen sc1")
    if lim:
        skip = k.lab("nob")
        k.e(f"s_cmp_ge_u32 {s(sNB)}, {lim}")
        k.e(f"s_cbranch_scc1 {skip}")
        k.e(f"s_call_b64 {s(sLNK, 2)}, L_batch")
        k.label(skip)
    k.e("s_waitcnt vmcnt(0)")
    k.e(f"s_branch {top}")
    k.label(done)


def poll_issue(k, soff, tag, voff, pl=PL):
    k.vm(f"buffer_load_dwordx2 {v(pl, 2)}, {v(voff)}, {s(R_WS, 4)}, {s(soff)} offen sc1", tag)


def csum(k, dst, regs, first=True):
    regs = list(regs)
    if first:
        k.e(f"v_add_u32 {v(dst)}, {v(regs[0])}, {v(regs[1])}")
        regs = regs[2:]
    for i in range(0, len(regs), 2):
        k.e(f"v_add3_u32 {v(dst)}, {v(regs[i])}, {v(regs[i + 1])}, {v(dst)}")


def row_sum(k, regs):
    for sh in (8, 4, 2, 1):
        for r in regs:
            k.e(f"v_add_u32_dpp {v(r)}, {v(r)}, {v(r)} row_ror:{sh} {DPP}")


def record(k, rec, voff, soff, off=0):
    if OPT["ack"]:
        k.wait(vm="all")
    k.vm(f"buffer_store_dwordx2 {v(rec, 2)}, {v(voff)}, {s(R_WS, 4)}, {s(soff)} offen offset:{off} sc1")


def verify(k, acc, pls, nvalid, retry):
    if nvalid < 64:
        k.e(f"v_cmp_gt_u32 vcc, {nvalid}, {v(LANE)}")
    for pl in pls:
        if nvalid < 64:
            k.e(f"v_cndmask_b32 {v(VT)}, 0, {v(pl + 1)}, vcc")
            k.e(f"v_sub_u32 {v(acc)}, {v(acc)}, {v(VT)}")
        else:
            k.e(f"v_sub_u32 {v(acc)}, {v(acc)}, {v(pl + 1)}")
    row_sum(k, [acc])
    for i, sr in enumerate((sT0, sT1, sT2, sT3)):
        k.e(f"v_readlane_b32 {s(sr)}, {v(acc)}, {16 * i}")
    k.e(f"s_add_u32 {s(sT0)}, {s(sT0)}, {s(sT1)}")
    k.e(f"s_add_u32 {s(sT2)}, {s(sT2)}, {s(sT3)}")
    k.e(f"s_add_u32 {s(sT0)}, {s(sT0)}, {s(sT2)}")
    ok = k.lab("vok")
    k.e(f"s_cmp_eq_u32 {s(sT0)}, 0")
    k.e(f"s_cbranch_scc1 {ok}")
    k.e(f"s_sub_u32 {s(sRT)}, {s(sRT)}, 1")
    k.e(f"s_cbranch_scc0 {retry}")
    k.label(ok)


def w2_loads(k, lo, hi):
    for sl in range(lo, hi):
        if sl < 21:
            k.e(f"s_add_u32 {s(sT3)}, {s(sW2)}, {(8 * (sl // 3) + sl % 3) * 14336}")
        else:
            k.e(f"s_add_u32 {s(sT3)}, {s(sW2L)}, {8 * (sl - 21) * 14336}")
        k.vm(f"buffer_load_dwordx4 {a(8 * sl, 4)}, {v(VW2A)}, {s(R_W2, 4)}, {s(sT3)} offen")
        k.vm(f"buffer_load_dwordx4 {a(8 * sl + 4, 4)}, {v(VW2B)}, {s(R_W2, 4)}, {s(sT3)} offen")


def img_dma(k, voff, rs, sbase, stride8, dst, tag):
    k.e(f"s_mul_i32 {s(sT0)}, {s(sWV)}, {14 * stride8}")
    k.e(f"s_add_u32 {s(sT0)}, {s(sT0)}, {s(sbase)}")
    k.e(f"s_mul_i32 {s(sT1)}, {s(sWV)}, 14336")
    for n in range(14):
        if n % 4 == 0:
            k.e(f"s_add_u32 m0, {s(sT1)}, {dst + 1024 * n}")
        if n:
            k.e(f"s_add_u32 {s(sT0)}, {s(sT0)}, {stride8 - 1024 if n % 4 else stride8 + 3072}")
        else:
            k.e("s_nop 0")
        k.vm(f"buffer_load_dwordx4 {v(voff)}, {s(rs, 4)}, {s(sT0)} offen offset:{1024 * (n % 4)} lds", tag)


def half_swz_off(k, dst, stride, flip=None):
    k.e(f"v_lshrrev_b32 {v(VT)}, 2, {v(LANE)}")
    k.e(f"v_lshrrev_b32 {v(VT2)}, 4, {v(LANE)}")
    k.e(f"v_xor_b32 {v(VT)}, {v(VT)}, {v(VT2)}")
    if flip is not None:
        k.e(f"v_xor_b32 {v(VT)}, {s(flip)}, {v(VT)}")
    k.e(f"v_and_b32 {v(VT)}, 1, {v(VT)}")
    k.e(f"v_lshlrev_b32 {v(VT)}, 6, {v(VT)}")
    k.e(f"v_lshl_add_u32 {v(VT)}, {v(TRC)}, 4, {v(VT)}")
    k.e(f"v_lshrrev_b32 {v(VT2)}, 3, {v(LANE)}")
    k.e(f"v_mul_u32_u24 {v(VT2)}, {stride}, {v(VT2)}")
    k.e(f"v_add_u32 {v(dst)}, {v(VT2)}, {v(VT)}")


def tr_half_addr(k, dst, sbase=None, base=0):
    k.e(f"v_lshl_add_u32 {v(VT)}, {v(HF)}, 2, {v(TRR)}")
    k.e(f"v_lshlrev_b32 {v(VT)}, 7, {v(VT)}")
    k.e(f"v_lshrrev_b32 {v(VT2)}, 1, {v(TRR)}")
    k.e(f"v_lshl_add_u32 {v(VT)}, {v(VT2)}, 6, {v(VT)}")
    k.e(f"v_bfe_u32 {v(VT2)}, {v(LANE)}, 4, 1")
    k.e(f"v_lshl_add_u32 {v(VT)}, {v(VT2)}, 5, {v(VT)}")
    k.e(f"v_lshl_add_u32 {v(VT)}, {v(TRC)}, 3, {v(VT)}")
    k.e(f"v_add_u32 {v(dst)}, {s(sbase) if sbase is not None else base}, {v(VT)}")
    k.e(f"v_xor_b32 {v(dst + 1)}, 64, {v(dst)}")


def corr_a(k, dst, c, t):
    k.e(f"v_cvt_pk_bf16_f32 {v(dst + 1)}, {v(c)}, 0")
    k.e(f"v_lshlrev_b32 {v(t)}, 16, {v(dst + 1)}")
    k.e(f"v_sub_f32 {v(t)}, {v(c)}, {v(t)}")
    k.e(f"v_cvt_pk_bf16_f32 {v(dst)}, {v(c)}, {v(t)}")
    k.e(f"v_mov_b32 {v(dst + 2)}, 0")
    k.e(f"v_mov_b32 {v(dst + 3)}, 0")


def prologue(k):
    k.e("s_cmp_ge_u32 s2, 256")
    k.e("s_cbranch_scc1 L_end")
    k.e("s_load_dwordx8 s[4:11], s[0:1], 0")
    k.e("s_load_dwordx8 s[12:19], s[0:1], 40")
    k.e("s_load_dwordx4 s[20:23], s[0:1], 72")
    k.e("s_load_dwordx2 s[24:25], s[0:1], 88")
    k.e(f"s_memrealtime {s(TAG, 2)}")
    k.e("v_and_b32 v1, 63, v0")
    k.e(f"v_lshrrev_b32 {v(VT)}, 6, v0")
    k.e(f"v_readfirstlane_b32 {s(sWV)}, {v(VT)}")
    k.e(f"s_and_b32 {s(sT0)}, s2, 7")
    k.e(f"s_lshr_b32 {s(sT1)}, s2, 3")
    k.e(f"s_lshr_b32 {s(sGA)}, {s(sT0)}, 1")
    k.e(f"s_lshl_b32 {s(sGA)}, {s(sGA)}, 2")
    k.e(f"s_and_b32 {s(sT2)}, {s(sT1)}, 3")
    k.e(f"s_add_u32 {s(sGA)}, {s(sGA)}, {s(sT2)}")
    k.e(f"s_and_b32 {s(sH)}, {s(sT0)}, 1")
    k.e(f"s_lshl_b32 {s(sH)}, {s(sH)}, 3")
    k.e(f"s_lshr_b32 {s(sT2)}, {s(sT1)}, 2")
    k.e(f"s_add_u32 {s(sH)}, {s(sH)}, {s(sT2)}")
    k.e(f"s_lshl_b32 {s(sG)}, {s(sT0)}, 1")
    k.e(f"s_lshr_b32 {s(sT2)}, {s(sT1)}, 4")
    k.e(f"s_add_u32 {s(sG)}, {s(sG)}, {s(sT2)}")
    k.e(f"s_and_b32 {s(sM)}, {s(sT1)}, 15")
    k.e(f"s_add_u32 {s(sT0)}, {s(sH)}, {s(sGA)}")
    k.e(f"s_mul_i32 {s(sT1)}, {s(sT0)}, 37")
    k.e(f"s_lshr_b32 {s(sT1)}, {s(sT1)}, 8")
    k.e(f"s_mul_i32 {s(sT1)}, {s(sT1)}, 7")
    k.e(f"s_sub_u32 {s(sT0)}, {s(sT0)}, {s(sT1)}")
    k.e(f"s_lshl_b32 {s(sC)}, {s(sT0)}, 7")
    for i in range(1, 7):
        k.e(f"s_add_u32 {s(sC + i)}, {s(sC + i - 1)}, 128")
        k.e(f"s_cmp_eq_u32 {s(sC + i)}, 896")
        k.e(f"s_cselect_b32 {s(sC + i)}, 0, {s(sC + i)}")
    k.e(f"v_lshrrev_b32 {v(VT)}, 3, {v(LANE)}")
    k.e(f"v_mul_u32_u24 {v(VXE)}, 896, {v(VT)}")
    k.e(f"v_lshrrev_b32 {v(VT)}, 4, {v(LANE)}")
    k.e(f"v_and_b32 {v(VT2)}, 7, {v(LANE)}")
    k.e(f"v_xor_b32 {v(VT)}, {v(VT)}, {v(VT2)}")
    k.e(f"v_lshl_add_u32 {v(VXE)}, {v(VT)}, 4, {v(VXE)}")
    k.e(f"v_xor_b32 {v(VXO)}, 64, {v(VXE)}")
    k.e(f"v_lshrrev_b32 {v(VT)}, 2, {v(LANE)}")
    k.e(f"v_mul_u32_u24 {v(VW)}, 2688, {v(VT)}")
    k.e(f"v_and_b32 {v(VT)}, 3, {v(LANE)}")
    k.e(f"v_lshlrev_b32 {v(VT)}, 4, {v(VT)}")
    k.e(f"v_min_u32 {v(VT)}, 40, {v(VT)}")
    k.e(f"v_add_u32 {v(VW)}, {v(VW)}, {v(VT)}")
    k.e(f"s_lshl_b32 {s(sXB)}, {s(sGA)}, 2")
    k.e(f"s_add_u32 {s(sXB)}, {s(sXB)}, {s(sWV)}")
    k.e(f"s_mul_i32 {s(sXB)}, {s(sXB)}, 28672")
    k.e(f"s_mul_i32 {s(sWB)}, {s(sH)}, 56")
    k.e(f"s_mul_i32 {s(sT0)}, {s(sWV)}, 43008")
    k.e(f"s_add_u32 {s(sWB)}, {s(sWB)}, {s(sT0)}")
    k.e("s_waitcnt lgkmcnt(0)")
    skip = k.lab("notag")
    k.e(f"s_or_b32 {s(sT0)}, s2, {s(sWV)}")
    k.e(f"s_cmp_lg_u32 {s(sT0)}, 0")
    k.e(f"s_cbranch_scc1 {skip}")
    srd(k, R_M, P_DBG, 256)
    k.e(f"s_or_b32 {s(TAG)}, {s(TAG)}, 1")
    k.e(f"v_mov_b32 {v(VZ)}, 0")
    k.e(f"v_mov_b32 {v(VTAG)}, {s(TAG)}")
    k.e(f"v_mov_b32 {v(VTAG + 1)}, {s(TAG + 1)}")
    k.e("s_mov_b64 exec, 1")
    k.e(f"buffer_store_dwordx2 {v(VTAG, 2)}, {v(VZ)}, {s(R_M, 4)}, 0 offen sc1")
    k.e("s_mov_b64 exec, -1")
    k.label(skip)
    srd(k, R_X, P_X, SZ_ACT)
    srd(k, R_W, P_WQKV, 448 * 2688)


def late_consts(k):
    k.e(f"s_min_u32 {s(sT0)}, {s(sM)}, 13")
    k.e(f"s_cmp_ge_u32 {s(sT0)}, 7")
    k.e(f"s_cselect_b32 {s(sUH)}, 1, 0")
    k.e(f"s_mul_i32 {s(sT1)}, {s(sUH)}, 7")
    k.e(f"s_sub_u32 {s(sCB)}, {s(sT0)}, {s(sT1)}")
    k.e(f"s_lshl_b32 {s(sCB)}, {s(sCB)}, 7")
    k.e(f"s_lshl_b32 {s(sTT0)}, {s(sG)}, 1")
    k.e(f"s_add_u32 {s(sTT0)}, {s(sTT0)}, {s(sUH)}")
    k.e(f"s_lshl_b32 {s(sTT0)}, {s(sTT0)}, 1")
    k.e(f"s_mov_b32 {s(sNB)}, 0")
    k.e(f"s_mov_b32 {s(sRT)}, {RETRY_MAX}")
    k.e(f"s_cmp_lt_u32 {s(sM)}, 14")
    k.e(f"s_cselect_b32 {s(sSZ)}, -1, 0")
    k.e(f"s_and_b32 {s(sT0)}, {s(sSZ)}, {1792 * 896}")
    srd(k, R_W2, P_W2, s(sT0))
    k.e(f"s_lshr_b32 {s(sT0)}, {s(sWV)}, 1")
    k.e(f"s_mul_i32 {s(sT0)}, {s(sT0)}, {56 * 14336}")
    k.e(f"s_add_u32 {s(sT0)}, {s(sT0)}, {s(sCB)}")
    k.e(f"s_and_b32 {s(sT1)}, {s(sWV)}, 1")
    k.e(f"s_mul_i32 {s(sT2)}, {s(sT1)}, {3 * 14336}")
    k.e(f"s_add_u32 {s(sW2)}, {s(sT0)}, {s(sT2)}")
    k.e(f"s_mul_i32 {s(sT2)}, {s(sT1)}, 14336")
    k.e(f"s_add_u32 {s(sW2L)}, {s(sT0)}, {s(sT2)}")
    k.e(f"s_add_u32 {s(sW2L)}, {s(sW2L)}, {6 * 14336}")
    half_swz_off(k, VW2A, 896, flip=sWV)
    k.e(f"v_add_u32 {v(VW2B)}, 7168, {v(VW2A)}")
    k.e(f"v_lshrrev_b32 {v(VFR)}, 4, {v(LANE)}")
    k.e(f"v_lshlrev_b32 {v(VFR)}, 3, {v(VFR)}")
    k.e(f"v_lshlrev_b32 {v(VPO)}, 3, {v(LANE)}")


def x_dma(k, i):
    k.e(f"s_add_u32 {s(sT0)}, {s(sXB)}, {s(sC + i)}")
    k.e(f"s_lshl_b32 {s(sT1)}, {s(sWV)}, 12")
    for j in range(4):
        k.e(f"s_add_u32 m0, {s(sT1)}, {XS[i] + 1024 * j}")
        if j:
            k.e(f"s_add_u32 {s(sT0)}, {s(sT0)}, 7168")
        else:
            k.e("s_nop 0")
        k.vm(f"buffer_load_dwordx4 {v(VXO if j & 1 else VXE)}, {s(R_X, 4)}, {s(sT0)} offen lds", f"x{i}")


def w_dma(k, i, mats, dst, tag):
    k.e(f"s_mul_i32 {s(sT0)}, {s(sC + i)}, 1344")
    k.e(f"s_add_u32 {s(sT0)}, {s(sT0)}, {s(sWB)}")
    k.e(f"s_lshl_b32 {s(sT1)}, {s(sWV)}, 10")
    for n, mat in enumerate(mats):
        k.e(f"s_add_u32 m0, {s(sT1)}, {dst + 4096 * n}")
        k.e(f"s_add_u32 {s(sT2)}, {s(sT0)}, {896 * mat}")
        k.vm(f"buffer_load_dwordx4 {v(VW)}, {s(R_W, 4)}, {s(sT2)} offen lds", tag)


def phase_a(k, hooks):
    LA = OPT["la"]

    def chunk_dma(i):
        x_dma(k, i)
        w_dma(k, i, (1, 2), WA[i], f"c{i}")

    for i in range(LA):
        chunk_dma(i)
    k.stamp("issued")
    srd(k, R_M, P_DBG, 256)
    srd(k, R_WS, P_WS, WS_SIZE)
    k.e(f"v_mov_b32 {v(VZ)}, 0")
    k.e(f"v_lshrrev_b32 {v(HF)}, 5, {v(LANE)}")
    k.e(f"v_and_b32 {v(T32)}, 31, {v(LANE)}")
    k.e(f"v_lshlrev_b32 {v(VL16)}, 4, {v(LANE)}")
    k.e(f"v_bfe_u32 {v(TRR)}, {v(LANE)}, 2, 2")
    k.e(f"v_and_b32 {v(TRC)}, 3, {v(LANE)}")
    k.e(f"s_mul_i32 {s(sT0)}, {s(sH)}, 1568")
    k.e(f"s_add_u32 {s(R_C)}, {s(P_WPHI)}, {s(sT0)}")
    k.e(f"s_addc_u32 {s(R_C + 1)}, {s(P_WPHI + 1)}, 0")
    k.e(f"s_mov_b32 {s(R_C + 2)}, 1568")
    k.e(f"s_mov_b32 {s(R_C + 3)}, 0x20000")
    late_consts(k)

    def wphi_loads():
        k.e(f"v_lshlrev_b32 {v(VT)}, 1, {v(T32)}")
        k.e(f"v_subrev_u32 {v(VT2)}, 4, {v(VT)}")
        k.e(f"v_cmp_le_u32 vcc, 28, {v(T32)}")
        k.e(f"v_cndmask_b32 {v(VT)}, {v(VT)}, {v(VT2)}, vcc")
        k.e(f"v_and_b32 {v(VT2)}, 26, {v(T32)}")
        k.e(f"v_cmp_eq_u32 vcc, 26, {v(VT2)}")
        k.e(f"v_mov_b32 {v(VT2)}, {hex(BIG)}")
        k.e(f"v_cndmask_b32 {v(VT)}, {v(VT)}, {v(VT2)}, vcc")
        k.e(f"v_cmp_eq_u32 vcc, 1, {v(HF)}")
        k.e(f"v_cndmask_b32 {v(VT2)}, {v(VT2)}, {v(VT)}, vcc")
        k.e(f"v_mul_u32_u24 {v(RSTD)}, 224, {v(HF)}")
        k.e(f"v_add_u32 {v(VT)}, {v(VT)}, {v(RSTD)}")
        for sidx in range(2):
            for j in range(8):
                last = sidx == 1 and j >= 4
                row = 16 * sidx + 8 * (j >> 2) + (j & 3)
                k.vm(f"buffer_load_ushort {v(PHR + 8 * sidx + j)}, {v(VT2 if last else VT)}, {s(R_C, 4)}, 0 offen offset:{row * 56}", "wphi")

    k.e(f"v_bfe_u32 {v(VT)}, {v(T32)}, 1, 3")
    k.e(f"v_xor_b32 {v(VT)}, {v(VT)}, {v(HF)}")
    k.e(f"v_lshlrev_b32 {v(VT)}, 4, {v(VT)}")
    k.e(f"v_lshl_add_u32 {v(VT)}, {v(T32)}, 7, {v(VT)}")
    k.e(f"s_lshl_b32 {s(sT0)}, {s(sWV)}, 12")
    k.e(f"s_add_u32 {s(sT0)}, {s(sT0)}, {XS[0]}")
    k.e(f"v_add_u32 {v(XR)}, {s(sT0)}, {v(VT)}")
    for q in range(1, 4):
        k.e(f"v_xor_b32 {v(XR + q)}, {32 * q}, {v(XR)}")
    k.e(f"v_lshl_add_u32 {v(VT)}, {v(HF)}, 3, {v(TRR)}")
    k.e(f"v_lshlrev_b32 {v(VT)}, 6, {v(VT)}")
    k.e(f"v_bfe_u32 {v(VT2)}, {v(LANE)}, 4, 1")
    k.e(f"v_lshl_add_u32 {v(VT)}, {v(VT2)}, 5, {v(VT)}")
    k.e(f"v_lshl_add_u32 {v(WR)}, {v(TRC)}, 3, {v(VT)}")
    k.e(f"v_add_u32 {v(WR)}, {WA[0]}, {v(WR)}")
    k.e(f"s_lshl_b32 {s(sT0)}, {s(sWV)}, 10")
    k.e(f"v_add_u32 {v(WC)}, {s(sT0)}, {v(WR)}")
    for r in range(4):
        k.e(f"v_mov_b32 {v(ONES + r)}, 0x3f803f80")
    k.e(f"v_mov_b32 {v(CORB + 2)}, 0")
    k.e(f"v_mov_b32 {v(CORB + 3)}, 0")
    k.e(f"s_mov_b32 {s(sMK)}, {hex(1 << 24)}")
    k.e(f"s_mov_b32 {s(sMK + 1)}, {hex(1 << 24)}")

    CF, XX = WF + 32, 216
    for i in range(7):
        last = i == 6
        k.wait(vm=f"c{i}")
        k.e("s_barrier")
        k.stamp(f"chunk{i}")
        for q in range(4):
            k.lg(f"ds_read_b128 {v(X + 16 * i + 4 * q, 4)}, {v(XR + q)}", f"xf{q}")
        for n in range(2):
            for t in range(2):
                k.lg(f"{TR} {v(CF + 4 * n + 2 * t, 2)}, {v(WC)} offset:{4096 * n + 256 * t}", f"cf{n}")
        order = [(q, 0) for q in range(4)] + [(q, 1) for q in range(4)]

        def wread(q, n):
            for t in range(2):
                k.lg(f"{TR} {v(WF + 8 * q + 4 * n + 2 * t, 2)}, {v(WR)} offset:{4096 * n + 1024 * q + 256 * t}", f"wf{q}{n}")

        for q in range(3):
            wread(q, 0)
        for q in range(4):
            xq = v(X + 16 * i + 4 * q, 4)
            k.wait(lg=f"xf{q}")
            k.e(f"{M32} {v(XX, 16)}, {xq}, {xq}, {'0' if i == 0 and q == 0 else v(XX, 16)}")
            wread(*order[3 + q])
        k.e(f"{M32} {a(ACS_K, 16)}, {v(ONES, 4)}, {v(CF, 4)}, {'0' if i == 0 else a(ACS_K, 16)}")
        wread(3, 1)
        k.e(f"{M32} {a(ACS_V, 16)}, {v(ONES, 4)}, {v(CF + 4, 4)}, {'0' if i == 0 else a(ACS_V, 16)}")
        if not last:
            for q in range(4):
                k.e(f"v_add_u32 {v(XR + q)}, {hex((XS[i + 1] - XS[i]) & 0xFFFFFFFF)}, {v(XR + q)}")
            k.e(f"v_add_u32 {v(WR)}, {hex((WA[i + 1] - WA[i]) & 0xFFFFFFFF)}, {v(WR)}")
            k.e(f"v_add_u32 {v(WC)}, {hex((WA[i + 1] - WA[i]) & 0xFFFFFFFF)}, {v(WC)}")
        for n in range(2):
            for q in range(4):
                xq = X + 16 * i + 4 * q
                k.wait(lg=f"wf{q}{n}")
                if n == 0:
                    for r in range(4):
                        k.e(f"v_cndmask_b32 {v(WF + 8 * q + r)}, {v(WF + 8 * q + r)}, {v(ONES)}, {s(sMK, 2)}")
                acc = (ACK, ACV)[n]
                k.e(f"{M32} {v(acc, 16)}, {v(WF + 8 * q + 4 * n, 4)}, {v(xq, 4)}, {'0' if i == 0 and q == 0 else v(acc, 16)}")
                if last and n == 0 and q == 1:
                    k.e(f"v_accvgpr_read_b32 {v(VT)}, {a(ACS_K)}")
                    k.e(f"v_accvgpr_read_b32 {v(VT2)}, {a(ACS_V)}")
                    k.e(f"s_lshl_b32 {s(sT0)}, {s(sWV)}, 2")
                    k.e(f"s_add_u32 {s(sT0)}, {s(sT0)}, {L_CS}")
                    k.e(f"v_lshlrev_b32 {v(WC)}, 4, {v(T32)}")
                    k.e(f"v_add_u32 {v(WC)}, {s(sT0)}, {v(WC)}")
                    k.lg(f"ds_write_b32 {v(WC)}, {v(VT)}")
                    k.lg(f"ds_write_b32 {v(WC)}, {v(VT2)} offset:512")
                if last and n == 0 and q == 2:
                    for lv, msk in enumerate((0xAAAAAAAA, 0xCCCCCCCC)):
                        k.e(f"s_mov_b32 {s(sMK)}, {hex(msk)}")
                        k.e(f"s_mov_b32 {s(sMK + 1)}, {hex(msk)}")
                        st = 1 << lv
                        for j in range(0, 16, 2 * st):
                            k.e(f"v_cndmask_b32 {v(XX + j)}, {v(XX + j)}, {v(XX + j + st)}, {s(sMK, 2)}")
                    k.e(f"s_mov_b32 {s(sMK)}, {hex(1 << 24)}")
                    k.e(f"s_mov_b32 {s(sMK + 1)}, {hex(1 << 24)}")
                if last and n == 0 and q == 3:
                    k.wait(lg="all")
                    k.e("s_barrier")
                    k.e(f"v_lshlrev_b32 {v(WC)}, 4, {v(T32)}")
                    k.lg(f"ds_read_b128 {v(CF, 4)}, {v(WC)} offset:{L_CS}", "csk")
                    k.lg(f"ds_read_b128 {v(CF + 4, 4)}, {v(WC)} offset:{L_CS + 512}", "csv")
                    for lv, msk in ((2, 0xFF00FF00), (3, 0xFFFF0000)):
                        k.e(f"s_mov_b32 {s(sMK)}, {hex(msk)}")
                        k.e(f"s_mov_b32 {s(sMK + 1)}, {hex(msk)}")
                        st = 1 << lv
                        for j in range(0, 16, 2 * st):
                            k.e(f"v_cndmask_b32 {v(XX + j)}, {v(XX + j)}, {v(XX + j + st)}, {s(sMK, 2)}")
                    k.e(f"v_mov_b32 {v(Q0)}, {v(XX)}")
                    k.e(f"s_mov_b32 {s(sMK)}, 0xf0f0f0f0")
                    k.e(f"s_mov_b32 {s(sMK + 1)}, 0xf0f0f0f0")
                    k.e(f"v_permlane32_swap_b32 {v(Q0)}, {v(XX)}")
                    k.e(f"v_cndmask_b32 {v(Q0)}, {v(Q0)}, {v(XX)}, {s(sMK, 2)}")
                    k.e(f"v_cmp_gt_u32 vcc, 32, {v(LANE)}")
                if last and n == 1 and q == 0:
                    k.wait(lg="csk")
                    k.e(f"v_add_f32 {v(CF)}, {v(CF)}, {v(CF + 1)}")
                    k.e(f"v_add_f32 {v(CF + 2)}, {v(CF + 2)}, {v(CF + 3)}")
                    k.e(f"v_add_f32 {v(CF)}, {v(CF)}, {v(CF + 2)}")
                    k.e(f"v_cndmask_b32 {v(CF)}, 0, {v(CF)}, vcc")
                    corr_a(k, XX, CF, VT)
                if last and n == 1 and q == 1:
                    k.e(f"v_mov_b32 {v(S0)}, {v(ACK + 12)}")
                    k.e(f"v_mov_b32 {v(S1)}, {v(ACK + 12)}")
                    k.e(f"v_mul_f32 {v(Q0)}, {f32bits(1.0 / 448)}, {v(Q0)}")
                    k.e(f"v_permlane32_swap_b32 {v(S0)}, {v(S1)}")
                    k.e(f"v_mul_f32 {v(S0)}, {f32bits(-1.0 / 448)}, {v(S0)}")
                    k.e(f"v_cvt_pk_bf16_f32 {v(CORB)}, {v(S0)}, {v(S0)}")
                    k.e(f"v_lshlrev_b32 {v(VT)}, 16, {v(CORB)}")
                    k.e(f"v_sub_f32 {v(VT)}, {v(S0)}, {v(VT)}")
                    k.e(f"v_cvt_pk_bf16_f32 {v(CORB + 1)}, {v(VT)}, 0")
                    k.e(f"{M32} {v(ACK, 16)}, {v(XX, 4)}, {v(CORB, 4)}, {v(ACK, 16)}")
                    k.e(f"v_fma_f32 {v(Q0)}, -{v(S0)}, {v(S0)}, {v(Q0)}")
                    k.e(f"v_max_f32 {v(Q0)}, 0, {v(Q0)}")
                    k.e(f"v_add_f32 {v(Q0)}, {f32bits(1e-5)}, {v(Q0)}")
                    k.e(f"v_rsq_f32 {v(RSTD)}, {v(Q0)}")
                if last and n == 1 and q == 2:
                    k.e(f"v_mul_f32 {v(SC)}, {hex(LOG2E)}, {v(RSTD)}")
                    k.wait(lg="csv")
                    k.e(f"v_add_f32 {v(CF + 4)}, {v(CF + 4)}, {v(CF + 5)}")
                    k.e(f"v_add_f32 {v(CF + 6)}, {v(CF + 6)}, {v(CF + 7)}")
                    k.e(f"v_add_f32 {v(CF + 4)}, {v(CF + 4)}, {v(CF + 6)}")
                    k.e(f"v_cndmask_b32 {v(CF + 4)}, 0, {v(CF + 4)}, vcc")
                    corr_a(k, XX + 4, CF + 4, VT)
                if n == 0 and q == 0:
                    if i + LA < 7:
                        chunk_dma(i + LA)
                    hooks(f"a_chunk{i}")
                    if i == OPT["wphi_at"]:
                        wphi_loads()
        if i == 5:
            k.wait(vm="wphi")
            for r in range(8):
                k.e(f"v_lshl_or_b32 {v(WPF + r)}, {v(PHR + 2 * r + 1)}, 16, {v(PHR + 2 * r)}")
    k.e(f"{M32} {v(ACV, 16)}, {v(XX + 4, 4)}, {v(CORB, 4)}, {v(ACV, 16)}")
    k.stamp("gemm")
    KB, VB = 192, 200
    P, EP, EN, OP, ON, T4 = 144, 160, 176, 208, 216, 224
    for i in range(8):
        k.e(f"v_cvt_pk_bf16_f32 {v(KB + i)}, {v(ACK + 2 * i)}, {v(ACK + 2 * i + 1)}")
    k.e(f"{M32} {v(P, 16)}, {v(WPF, 4)}, {v(KB, 4)}, 0")
    k.e(f"{M32} {v(P, 16)}, {v(WPF + 4, 4)}, {v(KB + 4, 4)}, {v(P, 16)}")
    for i in range(0, 16, 2):
        k.e(f"v_pk_mul_f32 {v(ACV + i, 2)}, {v(ACV + i, 2)}, {v(RSTD, 2)} op_sel_hi:[1,0]")
    for i in range(8):
        k.e(f"v_cvt_pk_bf16_f32 {v(VB + i)}, {v(ACV + 2 * i)}, {v(ACV + 2 * i + 1)}")
    k.e(f"v_mov_b32 {v(VT)}, 0x3f80")
    k.e(f"v_cndmask_b32 {v(VB + 6)}, {v(VB + 6)}, {v(VT)}, vcc")
    k.e(f"v_cndmask_b32 {v(VB + 7)}, {v(VB + 7)}, {v(VZ)}, vcc")
    AV, AP = S1, XR
    k.e(f"v_bfe_u32 {v(VT)}, {v(T32)}, 1, 1")
    k.e(f"v_xor_b32 {v(VT)}, {v(VT)}, {v(HF)}")
    k.e(f"v_lshlrev_b32 {v(VT)}, 4, {v(VT)}")
    k.e(f"v_bfe_u32 {v(VT2)}, {v(T32)}, 2, 1")
    k.e(f"v_lshl_add_u32 {v(VT)}, {v(VT2)}, 5, {v(VT)}")
    k.e(f"v_lshl_add_u32 {v(VT)}, {v(T32)}, 6, {v(VT)}")
    k.e(f"s_lshl_b32 {s(sT0)}, {s(sWV)}, 11")
    k.e(f"s_add_u32 {s(sT0)}, {s(sT0)}, {L_V}")
    k.e(f"v_add_u32 {v(AV)}, {s(sT0)}, {v(VT)}")
    k.e(f"v_xor_b32 {v(VT)}, 32, {v(AV)}")
    k.lg(f"ds_write_b128 {v(AV)}, {v(VB, 4)}")
    k.lg(f"ds_write_b128 {v(VT)}, {v(VB + 4, 4)}")
    k.e(f"v_and_b32 {v(VT)}, 1, {v(T32)}")
    k.e(f"v_xor_b32 {v(VT)}, {v(VT)}, {v(HF)}")
    k.e(f"v_lshlrev_b32 {v(VT)}, 4, {v(VT)}")
    k.e(f"v_bfe_u32 {v(VT2)}, {v(T32)}, 1, 2")
    k.e(f"v_lshl_add_u32 {v(VT)}, {v(VT2)}, 5, {v(VT)}")
    k.e(f"v_lshl_add_u32 {v(VT)}, {v(T32)}, 7, {v(VT)}")
    k.e(f"s_lshl_b32 {s(sT0)}, {s(sWV)}, 12")
    k.e(f"v_add_u32 {v(AP)}, {s(sT0)}, {v(VT)}")
    for b in range(1, 4):
        k.e(f"v_xor_b32 {v(AP + b)}, {32 * b}, {v(AP)}")
    softmax_pair(k, P, EP, EN, OP, ON, T4, SC, fill=lambda i: hooks(f"a_sm{i}"))
    for b, r in enumerate((OP, OP + 4, ON, ON + 4)):
        k.lg(f"ds_write_b128 {v(AP + b)}, {v(r, 4)} offset:{L_PHI}")
    RA, RB = XR, XR + 1
    k.e(f"v_lshrrev_b32 {v(VT)}, 2, {v(LANE)}")
    k.e(f"v_lshrrev_b32 {v(VT2)}, 1, {v(TRC)}")
    k.e(f"v_lshlrev_b32 {v(VT2)}, 3, {v(VT2)}")
    k.e(f"v_xor_b32 {v(S0)}, {v(TRC)}, {v(VT)}")
    k.e(f"v_and_b32 {v(S0)}, 1, {v(S0)}")
    k.e(f"v_lshl_add_u32 {v(S0)}, {v(S0)}, 4, {v(VT2)}")
    k.e(f"v_bfe_u32 {v(S1)}, {v(VT)}, 1, 2")
    k.e(f"v_xor_b32 {v(S1)}, {s(sWV)}, {v(S1)}")
    k.e(f"v_lshl_add_u32 {v(S0)}, {v(S1)}, 5, {v(S0)}")
    k.e(f"v_lshl_add_u32 {v(RA)}, {v(VT)}, 7, {v(S0)}")
    k.e(f"v_lshrrev_b32 {v(S0)}, 1, {v(VT)}")
    k.e(f"v_xor_b32 {v(S0)}, {v(TRC)}, {v(S0)}")
    k.e(f"v_and_b32 {v(S0)}, 1, {v(S0)}")
    k.e(f"v_lshl_add_u32 {v(S0)}, {v(S0)}, 4, {v(VT2)}")
    k.e(f"v_bfe_u32 {v(S1)}, {v(VT)}, 2, 1")
    k.e(f"v_lshl_add_u32 {v(S0)}, {v(S1)}, 5, {v(S0)}")
    k.e(f"v_lshl_add_u32 {v(RB)}, {v(VT)}, 6, {v(S0)}")
    k.e(f"v_xor_b32 {v(RB + 1)}, 32, {v(RB)}")
    k.stamp("softmax")
    k.wait(vm="wq", lg="all")
    k.e("s_barrier")
    ok, top = k.lab("tagok"), k.lab("tagw")
    k.e(f"s_mov_b32 {s(sT3)}, {POLL_MAX}")
    k.label(top)
    k.e(f"v_readfirstlane_b32 {s(TAG)}, {v(VTAG)}")
    k.e(f"s_cmp_lg_u32 {s(TAG)}, 0")
    k.e(f"s_cbranch_scc1 {ok}")
    k.e(f"s_sub_u32 {s(sT3)}, {s(sT3)}, 1")
    k.e(f"s_cbranch_scc1 {ok}")
    k.e(f"buffer_load_dword {v(VTAG)}, {v(VZ)}, {s(R_M, 4)}, 0 offen sc1")
    k.e("s_waitcnt vmcnt(0)")
    k.e(f"s_branch {top}")
    k.label(ok)
    FA, FB, KV, KO = 144, 160, 192, 200
    for ks in range(4):
        for t in range(2):
            k.lg(f"{TR} {v(FA + 4 * ks + 2 * t, 2)}, {v(RA)} offset:{L_PHI + 4096 * ks + 2048 * t}")
        for u in range(2):
            for t in range(2):
                k.lg(f"{TR} {v(FB + 8 * ks + 4 * u + 2 * t, 2)}, {v(RB + u)} offset:{L_V + 2048 * ks + 1024 * t}", f"kf{ks}")
        if ks >= 1:
            k.wait(lg=f"kf{ks - 1}")
            for u in range(2):
                k.e(f"{M16} {v(KV + 4 * u, 4)}, {v(FA + 4 * (ks - 1), 4)}, {v(FB + 8 * (ks - 1) + 4 * u, 4)}, {'0' if ks == 1 else v(KV + 4 * u, 4)}")
    k.e(f"s_lshl_b32 {s(sT0)}, {s(sH)}, 2")
    k.e(f"s_add_u32 {s(sT0)}, {s(sT0)}, {s(sWV)}")
    k.e(f"s_lshl_b32 {s(sD)}, {s(sT0)}, 14")
    k.e(f"s_lshl_b32 {s(sT1)}, {s(sGA)}, 10")
    k.e(f"s_add_u32 {s(sT1)}, {s(sT1)}, {s(sD)}")
    k.e(f"s_lshl_b32 {s(sF)}, {s(sT0)}, 9")
    k.e(f"s_add_u32 {s(sF)}, {s(sF)}, {hex(WS_F1)}")
    k.e(f"s_lshl_b32 {s(sT0)}, {s(sGA)}, 5")
    k.e(f"s_add_u32 {s(sT0)}, {s(sT0)}, {s(sF)}")
    k.wait(lg="kf3")
    for u in range(2):
        k.e(f"{M16} {v(KV + 4 * u, 4)}, {v(FA + 12, 4)}, {v(FB + 24 + 4 * u, 4)}, {v(KV + 4 * u, 4)}")
    k.e(f"v_add_u32 {v(WR)}, {hex((L_WQ - WA[6]) & 0xFFFFFFFF)}, {v(WR)}")
    k.e(f"s_lshl_b32 {s(sT2)}, {s(sWV)}, 10")
    k.e(f"v_add_u32 {v(WC)}, {s(sT2)}, {v(WR)}")
    for i in range(4):
        k.e(f"v_cvt_pk_bf16_f32 {v(KO + i)}, {v(KV + 2 * i)}, {v(KV + 2 * i + 1)}")
    k.vm(f"buffer_store_dwordx4 {v(KO, 4)}, {v(VL16)}, {s(R_WS, 4)}, {s(sT1)} offen sc1", "kvst")
    csum(k, VTAG + 1, range(KO, KO + 4))
    row_sum(k, [VTAG + 1])
    record(k, VTAG, VFR, sT0)
    k.stamp("flag1")
    ACQ, QF = 144, 160

    def qread(n, reg, base, off):
        for t in range(2):
            k.lg(f"{TR} {v(reg + 2 * t, 2)}, {v(base)} offset:{off + 256 * t}", n)

    seq = [("c", i) for i in range(7)] + [("m", st) for st in range(28)]
    NB = 8

    def issue(n):
        kind, i = seq[n]
        if kind == "c":
            qread(f"q{n}", QF + 4 * (n % NB), WC, 4096 * i)
        else:
            qread(f"q{n}", QF + 4 * (n % NB), WR, 4096 * (i >> 2) + 1024 * (i & 3))

    AH = 4
    for n in range(AH):
        issue(n)
    for n in range(len(seq)):
        if n + AH < len(seq):
            issue(n + AH)
        k.wait(lg=f"q{n}")
        kind, i = seq[n]
        f = v(QF + 4 * (n % NB), 4)
        if kind == "c":
            k.e(f"{M32} {a(ACS_K, 16)}, {v(ONES, 4)}, {f}, {'0' if i == 0 else a(ACS_K, 16)}")
        else:
            k.e(f"{M32} {v(ACQ, 16)}, {f}, {v(X + 4 * i, 4)}, {'0' if i == 0 else v(ACQ, 16)}")
        if n == 10:
            k.e(f"v_accvgpr_read_b32 {v(VT)}, {a(ACS_K)}")
            k.e(f"s_lshl_b32 {s(sT2)}, {s(sWV)}, 2")
            k.e(f"s_add_u32 {s(sT2)}, {s(sT2)}, {L_CS + 1024}")
            k.e(f"v_lshlrev_b32 {v(VT2)}, 4, {v(T32)}")
            k.e(f"v_add_u32 {v(VT2)}, {s(sT2)}, {v(VT2)}")
            k.lg(f"ds_write_b32 {v(VT2)}, {v(VT)}")
        if n == 24:
            k.e(f"v_lshlrev_b32 {v(VT2)}, 4, {v(T32)}")
            k.e("s_barrier")
            k.lg(f"ds_read_b128 {v(192, 4)}, {v(VT2)} offset:{L_CS + 1024}", "csq")
        hooks(f"q_mm{n}")
        if n == 30:
            k.e(f"v_cmp_gt_u32 vcc, 32, {v(LANE)}")
            k.e(f"v_add_f32 {v(192)}, {v(192)}, {v(193)}")
            k.e(f"v_add_f32 {v(194)}, {v(194)}, {v(195)}")
            k.e(f"v_add_f32 {v(192)}, {v(192)}, {v(194)}")
            k.e(f"v_cndmask_b32 {v(192)}, 0, {v(192)}, vcc")
            corr_a(k, 196, 192, VT)
    k.e(f"{M32} {v(ACQ, 16)}, {v(196, 4)}, {v(CORB, 4)}, {v(ACQ, 16)}")
    for i in range(8):
        k.e(f"v_cvt_pk_bf16_f32 {v(KB + i)}, {v(ACQ + 2 * i)}, {v(ACQ + 2 * i + 1)}")
    k.e(f"{M32} {v(P, 16)}, {v(WPF, 4)}, {v(KB, 4)}, 0")
    k.e(f"{M32} {v(P, 16)}, {v(WPF + 4, 4)}, {v(KB + 4, 4)}, {v(P, 16)}")
    ID = 96
    k.e(f"v_lshlrev_b32 {v(VT)}, 3, {v(HF)}")
    k.e(f"v_sub_u32 {v(VT)}, {v(T32)}, {v(VT)}")
    k.e(f"v_mov_b32 {v(VT2)}, 0x3f80")
    k.e(f"v_mov_b32 {v(S0)}, 0x3f800000")
    for r in range(4):
        k.e(f"v_cmp_eq_u32 vcc, {2 * r}, {v(VT)}")
        k.e(f"v_cndmask_b32 {v(ID + r)}, 0, {v(VT2)}, vcc")
        k.e(f"v_cmp_eq_u32 vcc, {2 * r + 1}, {v(VT)}")
        k.e(f"v_cndmask_b32 {v(ID + r)}, {v(ID + r)}, {v(S0)}, vcc")

    def qfill(i):
        if i == 2:
            poll_issue(k, sF, "p1", VPO)
        hooks(f"q_sm{i}")

    softmax_pair(k, P, EP, EN, OP, ON, T4, SC, fill=qfill)
    k.stamp("qdone")


def phase_b(k, hooks):
    OP, ON, ID, SUM, KF, O, OB, PB, CS = 208, 216, 96, 100, 116, 144, 160, 32, 14
    poll(k, sF, "p1", VPO)
    k.stamp("wait1")
    retry = k.lab("retry_b")
    k.label(retry)
    k.e(f"s_mov_b32 {s(sT1)}, {s(sD)}")
    for p in range(16):
        if p and p % 4 == 0:
            k.e(f"s_add_u32 {s(sT1)}, {s(sT1)}, 4096")
        k.vm(f"buffer_load_dwordx4 {v(PB + 4 * p, 4)}, {v(VL16)}, {s(R_WS, 4)}, {s(sT1)} offen offset:{1024 * (p % 4)} sc1", f"kp{p}")
    hooks("b_loads")
    AW, AO = XR, XR + 1
    k.e(f"v_and_b32 {v(VT2)}, 15, {v(LANE)}")
    k.e(f"v_bfe_u32 {v(VT)}, {v(LANE)}, 4, 1")
    k.e(f"v_lshlrev_b32 {v(VT)}, 9, {v(VT)}")
    k.e(f"v_lshl_add_u32 {v(VT)}, {v(HF)}, 8, {v(VT)}")
    k.e(f"v_lshl_add_u32 {v(VT)}, {v(VT2)}, 4, {v(VT)}")
    k.e(f"s_lshl_b32 {s(sT2)}, {s(sWV)}, 10")
    k.e(f"s_add_u32 {s(sT2)}, {s(sT2)}, {L_KVF}")
    k.e(f"v_add_u32 {v(AW)}, {s(sT2)}, {v(VT)}")
    k.e(f"v_add_u32 {v(AW + 2)}, {L_KVF}, {v(VL16)}")
    k.e(f"v_bfe_u32 {v(VT)}, {v(LANE)}, 4, 1")
    k.e(f"v_lshlrev_b32 {v(AW + 3)}, 8, {v(VT)}")
    k.e(f"v_lshl_add_u32 {v(AW + 3)}, {v(HF)}, 3, {v(AW + 3)}")
    k.e(f"v_lshlrev_b32 {v(VT)}, 14, {v(VT)}")
    k.e(f"v_lshl_add_u32 {v(VT)}, {v(HF)}, 8, {v(VT)}")
    k.e(f"v_lshl_add_u32 {v(AO)}, {v(VT2)}, 4, {v(VT)}")
    for p in range(16):
        k.wait(vm=f"kp{p}")
        k.e(f"{M32} {v(SUM, 16)}, {v(ID, 4)}, {v(PB + 4 * p, 4)}, {'0' if p == 0 else v(SUM, 16)}")
        csum(k, CS, range(PB + 4 * p, PB + 4 * p + 4), p == 0)
    verify(k, CS, [PL], 64, retry)
    k.stamp("kvsum")
    for i in range(4):
        k.e(f"v_cvt_pk_bf16_f32 {v(KF + i)}, {v(SUM + 2 * i)}, {v(SUM + 2 * i + 1)}")
    k.lg(f"ds_write_b128 {v(AW)}, {v(KF, 4)}")
    k.e(f"s_lshl_b32 {s(sT0)}, {s(sGA)}, 2")
    k.e(f"s_add_u32 {s(sT0)}, {s(sT0)}, {s(sWV)}")
    k.e(f"s_lshl_b32 {s(sT1)}, {s(sT0)}, 15")
    k.e(f"s_lshl_b32 {s(sT2)}, {s(sH)}, 10")
    k.e(f"s_add_u32 {s(sT1)}, {s(sT1)}, {s(sT2)}")
    k.e(f"s_add_u32 {s(sT1)}, {s(sT1)}, {hex(WS_O)}")
    k.e(f"s_lshl_b32 {s(sT0)}, {s(sT0)}, 9")
    k.e(f"s_lshl_b32 {s(sT2)}, {s(sH)}, 4")
    k.e(f"s_add_u32 {s(sT0)}, {s(sT0)}, {s(sT2)}")
    k.e(f"s_add_u32 {s(sT0)}, {s(sT0)}, {hex(WS_F2)}")
    k.wait(lg="all")
    k.e("s_barrier")
    for i in range(4):
        k.lg(f"ds_read_b128 {v(KF + 4 * i, 4)}, {v(AW + 2)} offset:{1024 * i}", f"kf{i}")
    for i, r in enumerate((OP, OP + 4, ON, ON + 4)):
        k.wait(lg=f"kf{i}")
        k.e(f"{M32} {v(O, 16)}, {v(KF + 4 * i, 4)}, {v(r, 4)}, {'0' if i == 0 else v(O, 16)}")
    k.e(f"v_cmp_gt_u32 vcc, 32, {v(LANE)}")
    D0, D1 = S0, Q0
    k.e(f"v_mov_b32 {v(D0)}, {v(O + 12)}")
    k.e(f"v_mov_b32 {v(D1)}, {v(O + 12)}")
    k.e(f"v_permlane32_swap_b32 {v(D0)}, {v(D1)}")
    k.e(f"v_add_f32 {v(D0)}, {f32bits(1e-6)}, {v(D0)}")
    k.e(f"v_rcp_f32 {v(D0)}, {v(D0)}")
    k.e(f"v_cndmask_b32 {v(O + 12)}, {v(O + 12)}, {v(VZ)}, vcc")
    for i in range(0, 16, 2):
        k.e(f"v_pk_mul_f32 {v(O + i, 2)}, {v(O + i, 2)}, {v(D0, 2)} op_sel_hi:[1,0]")
    for i in range(8):
        k.e(f"v_cvt_pk_bf16_f32 {v(OB + i)}, {v(O + 2 * i)}, {v(O + 2 * i + 1)}")
    k.vm(f"buffer_store_dwordx4 {v(OB, 4)}, {v(AO)}, {s(R_WS, 4)}, {s(sT1)} offen sc1")
    k.vm(f"buffer_store_dwordx4 {v(OB + 4, 4)}, {v(AO)}, {s(R_WS, 4)}, {s(sT1)} offen offset:512 sc1", "ost")
    csum(k, VTAG + 1, range(OB, OB + 8))
    row_sum(k, [VTAG + 1])
    record(k, VTAG, AW + 3, sT0)
    k.stamp("flag2")


def w1_voff(k, dst):
    half_swz_off(k, dst, 3584)


def phase_c(k, hooks):
    CA1, CA2, VHS, CS, ACC, OF = 10, 16, 14, 15, 224, 32
    slots = [v(r, 4) for r in range(96, 224, 4)] + [v(24, 4), v(28, 4)] + [a(r, 4) for r in range(224, 256, 4)]
    halves = [(lambda r: (lambda t: v(r + 2 * t, 2)))(r) for r in list(range(96, 224, 4)) + [24, 28]]
    halves += [(lambda r: (lambda t: a(r + 2 * t, 2)))(r) for r in range(224, 256, 4)]
    NS = len(slots)
    k.e(f"s_and_b32 {s(sT0)}, {s(sSZ)}, {448 * 3584}")
    srd(k, R_W, P_W1, s(sT0))
    w1_voff(k, 20)
    k.e(f"s_lshl_b32 {s(sD)}, {s(sM)}, 8")
    img_dma(k, 20, R_W, sD, 8 * 3584, L_W1A, "w1a")
    k.e(f"s_lshl_b32 {s(sT0)}, {s(sTT0)}, 1")
    k.e(f"s_add_u32 {s(sT0)}, {s(sT0)}, {s(sWV)}")
    k.e(f"s_lshl_b32 {s(sF)}, {s(sT0)}, 8")
    k.e(f"s_add_u32 {s(sF)}, {s(sF)}, {hex(WS_F2)}")
    k.e(f"s_lshl_b32 {s(sD)}, {s(sT0)}, 14")
    k.e(f"s_add_u32 {s(sD)}, {s(sD)}, {hex(WS_O)}")
    k.e(f"v_lshlrev_b32 {v(VPO)}, 3, {v(T32)}")
    poll_issue(k, sF, "p2", VPO)
    q, u = VT, VT2
    for dst, extra in ((CA1, False), (CA2, True)):
        k.e(f"v_lshlrev_b32 {v(VT)}, 4, {v(HF)}")
        k.e(f"v_bfe_u32 {v(VT2)}, {v(LANE)}, 4, 1")
        k.e(f"v_lshl_add_u32 {v(VT)}, {v(VT2)}, 2, {v(VT)}")
        k.e(f"v_add_u32 {v(VT)}, {v(VT)}, {v(TRR)}")
        if extra:
            k.e(f"v_lshlrev_b32 {v(VT2)}, 2, {v(HF)}")
            k.e(f"v_sub_u32 {v(VT)}, {v(VT)}, {v(VT2)}")
            k.e(f"v_add_u32 {v(VT)}, 8, {v(VT)}")
        k.e(f"v_bfe_u32 {v(VT2)}, {v(VT)}, 1, 2")
        k.e(f"v_lshlrev_b32 {v(VT)}, 7, {v(VT)}")
        k.e(f"v_lshl_add_u32 {v(VT)}, {v(VT2)}, 5, {v(VT)}")
        k.e(f"v_lshl_add_u32 {v(VT)}, {v(TRC)}, 3, {v(VT)}")
        k.e(f"v_add_u32 {v(dst)}, {L_WO}, {v(VT)}")
        for nt in range(1, 4):
            k.e(f"v_xor_b32 {v(dst + nt)}, {32 * nt}, {v(dst)}")
    k.e(f"s_lshl_b32 {s(sT0)}, {s(sWV)}, 13")
    k.e(f"s_add_u32 {s(sT0)}, {s(sT0)}, {L_STG}")
    k.e(f"v_add_u32 {v(VST)}, {s(sT0)}, {v(VL16)}")
    tr_half_addr(k, VTR, sbase=sT0)
    k.e(f"v_and_b32 {v(VT)}, 15, {v(LANE)}")
    k.e(f"v_lshlrev_b32 {v(VT)}, 4, {v(VT)}")
    k.e(f"v_lshl_add_u32 {v(VHS)}, {v(VFR)}, 6, {v(VT)}")

    def wread(n):
        hh, nt = n >> 2, n & 3
        x = nt ^ (2 * (hh & 1))
        k.lg(f"{TR} {halves[n % NS](0)}, {v(CA1 + x)} offset:{3584 * hh}")
        k.lg(f"{TR} {halves[n % NS](1)}, {v(CA2 + x)} offset:{3584 * hh}", f"wo{n}")

    retry = k.lab("retry_c")
    k.label(retry)
    for i in range(8):
        k.e(f"v_lshlrev_b32 {v(ACC + 2 * i)}, 16, {v(XRES + i)}")
        k.e(f"v_and_b32 {v(ACC + 2 * i + 1)}, 0xffff0000, {v(XRES + i)}")
    for n in range(NS):
        wread(n)
    k.stamp("c_pre")
    poll(k, sF, "p2", VPO, lim=OPT["lim2"])
    k.stamp("wait2")
    k.e(f"s_mov_b32 {s(sT1)}, {s(sD)}")
    for hh in range(16):
        if hh and hh % 4 == 0:
            k.e(f"s_add_u32 {s(sT1)}, {s(sT1)}, 4096")
        k.vm(f"buffer_load_dwordx4 {v(OF + 4 * hh, 4)}, {v(VL16)}, {s(R_WS, 4)}, {s(sT1)} offen offset:{1024 * (hh % 4)} sc1", f"of{hh}")
    hooks("c_loads")
    for hh in range(16):
        k.wait(vm=f"of{hh}", lg=f"wo{4 * hh + 3}")
        for nt in range(4):
            n = 4 * hh + nt
            k.e(f"{M16} {v(ACC + 4 * nt, 4)}, {slots[n % NS]}, {v(OF + 4 * hh, 4)}, {v(ACC + 4 * nt, 4)}")
            if nt == 0:
                csum(k, CS, range(OF + 4 * hh, OF + 4 * hh + 4), hh == 0)
        for nt in range(4):
            if 4 * hh + nt + NS < 64:
                wread(4 * hh + nt + NS)
    verify(k, CS, [PL], 32, retry)
    k.stamp("c_mm")
    HB = 32
    k.e(f"s_lshr_b32 {s(sT0)}, {s(sWV)}, 1")
    k.e(f"s_add_u32 {s(sT0)}, {s(sT0)}, {s(sTT0)}")
    k.e(f"s_and_b32 {s(sT3)}, {s(sWV)}, 1")
    k.e(f"s_mul_i32 {s(sT1)}, {s(sT0)}, 28672")
    k.e(f"s_lshl_b32 {s(sT2)}, {s(sCB)}, 5")
    k.e(f"s_add_u32 {s(sT1)}, {s(sT1)}, {s(sT2)}")
    k.e(f"s_lshl_b32 {s(sT2)}, {s(sT3)}, 8")
    k.e(f"s_add_u32 {s(sT1)}, {s(sT1)}, {s(sT2)}")
    k.e(f"s_add_u32 {s(sT1)}, {s(sT1)}, {hex(WS_H)}")
    for i in range(8):
        k.e(f"v_cvt_pk_bf16_f32 {v(HB + i)}, {v(ACC + 2 * i)}, {v(ACC + 2 * i + 1)}")
        if i % 4 == 3:
            k.vm(f"buffer_store_dwordx4 {v(HB + i - 3, 4)}, {v(VHS)}, {s(R_WS, 4)}, {s(sT1)} offen offset:{512 * (i - 3)} sc1")
    csum(k, VTAG + 1, range(HB, HB + 8))
    k.e(f"s_lshl_b32 {s(sT1)}, {s(sT0)}, 9")
    k.e(f"s_mul_i32 {s(sT2)}, {s(sT3)}, 224")
    k.e(f"s_add_u32 {s(sT1)}, {s(sT1)}, {s(sT2)}")
    k.e(f"s_lshr_b32 {s(sT2)}, {s(sCB)}, 2")
    k.e(f"s_add_u32 {s(sT1)}, {s(sT1)}, {s(sT2)}")
    k.e(f"s_add_u32 {s(sT1)}, {s(sT1)}, {hex(WS_F3)}")
    row_sum(k, [VTAG + 1])
    record(k, VTAG, VFR, sT1)
    k.stamp("flag3")
    k.e("s_barrier")
    k.e(f"s_lshl_b32 {s(sD)}, {s(sM)}, 8")
    k.e(f"s_add_u32 {s(sD)}, {s(sD)}, 128")
    k.e(f"s_mov_b32 {s(sF)}, {s(sT0)}")
    img_dma(k, 20, R_W, sD, 8 * 3584, L_W1B, "w1b")
    U, SQ = 40, 56
    for i in range(8):
        k.e(f"v_lshlrev_b32 {v(U + 2 * i)}, 16, {v(HB + i)}")
        k.e(f"v_and_b32 {v(U + 2 * i + 1)}, 0xffff0000, {v(HB + i)}")
    k.e(f"v_pk_add_f32 {v(SQ, 2)}, {v(U, 2)}, {v(U + 2, 2)}")
    k.e(f"v_pk_mul_f32 {v(SQ + 2, 2)}, {v(U, 2)}, {v(U, 2)}")
    k.e(f"v_pk_fma_f32 {v(SQ + 2, 2)}, {v(U + 2, 2)}, {v(U + 2, 2)}, {v(SQ + 2, 2)}")
    for i in range(4, 16, 2):
        k.e(f"v_pk_add_f32 {v(SQ, 2)}, {v(SQ, 2)}, {v(U + i, 2)}")
        k.e(f"v_pk_fma_f32 {v(SQ + 2, 2)}, {v(U + i, 2)}, {v(U + i, 2)}, {v(SQ + 2, 2)}")
    k.e(f"v_add_f32 {v(SQ)}, {v(SQ)}, {v(SQ + 1)}")
    k.e(f"v_add_f32 {v(SQ + 1)}, {v(SQ + 2)}, {v(SQ + 3)}")
    k.e(f"v_permlane32_swap_b32 {v(SQ)}, {v(SQ + 1)}")
    k.e(f"v_add_f32 {v(SQ)}, {v(SQ)}, {v(SQ + 1)}")
    k.e(f"v_mov_b32 {v(SQ + 1)}, {v(SQ)}")
    k.e(f"v_permlane16_swap_b32 {v(SQ)}, {v(SQ + 1)}")
    k.e(f"v_add_f32 {v(SQ)}, {v(SQ)}, {v(SQ + 1)}")
    k.e(f"v_mov_b32 {v(SQ + 1)}, {v(SQ)}")
    k.e(f"v_mov_b32 {v(SQ + 2)}, {v(VTAG)}")
    k.e(f"v_mov_b32 {v(SQ + 3)}, {v(VTAG)}")
    k.e(f"v_permlane32_swap_b32 {v(SQ)}, {v(SQ + 1)}")
    k.e(f"s_lshl_b32 {s(sT1)}, {s(sF)}, 12")
    k.e(f"s_lshl_b32 {s(sT2)}, {s(sCB)}, 2")
    k.e(f"s_add_u32 {s(sT1)}, {s(sT1)}, {s(sT2)}")
    k.e(f"s_and_b32 {s(sT3)}, {s(sWV)}, 1")
    k.e(f"s_lshl_b32 {s(sT2)}, {s(sT3)}, 8")
    k.e(f"s_add_u32 {s(sT1)}, {s(sT1)}, {s(sT2)}")
    k.e(f"s_add_u32 {s(sT1)}, {s(sT1)}, {hex(WS_ST)}")
    k.e(f"v_and_b32 {v(VT)}, 0xff, {v(VHS)}")
    k.vm(f"buffer_store_dwordx4 {v(SQ, 4)}, {v(VT)}, {s(R_WS, 4)}, {s(sT1)} offen sc1")
    k.e(f"s_lshr_b32 {s(sT1)}, {s(sWV)}, 1")
    k.e(f"s_lshl_b32 {s(sT1)}, {s(sT1)}, 12")
    k.e(f"s_add_u32 {s(sT1)}, {s(sT1)}, {s(sT2)}")
    k.e(f"s_add_u32 {s(sT1)}, {s(sT1)}, {L_HRES}")
    k.e(f"v_add_u32 {v(VT)}, {s(sT1)}, {v(VHS)}")
    k.lg(f"ds_write_b128 {v(VT)}, {v(HB, 4)}")
    k.lg(f"ds_write_b128 {v(VT)}, {v(HB + 4, 4)} offset:2048")


def phase_d(k, hooks):
    AD, CS, VB2, CAF, HFR, ACC, WB, CB = 10, 14, 15, 16, 32, 144, 208, 244
    ST = ACC + 48
    k.e(f"s_lshl_b32 {s(sT0)}, {s(sG)}, 2")
    k.e(f"s_add_u32 {s(sT0)}, {s(sT0)}, {s(sWV)}")
    k.e(f"s_lshl_b32 {s(sF)}, {s(sT0)}, 9")
    k.e(f"s_add_u32 {s(sF)}, {s(sF)}, {hex(WS_F3)}")
    k.e(f"s_mul_i32 {s(sD)}, {s(sT0)}, 28672")
    k.e(f"s_add_u32 {s(sD)}, {s(sD)}, {hex(WS_H)}")
    k.e(f"v_min_u32 {v(VPO)}, 55, {v(LANE)}")
    k.e(f"v_lshlrev_b32 {v(VPO)}, 3, {v(VPO)}")
    poll_issue(k, sF, "p3", VPO)
    tr_half_addr(k, AD, base=L_W1A)
    k.e(f"v_add_u32 {v(AD + 2)}, {L_W1B - L_W1A}, {v(AD)}")
    k.e(f"v_add_u32 {v(AD + 3)}, {L_W1B - L_W1A}, {v(AD + 1)}")
    k.e(f"v_mov_b32 {v(CB + 3)}, 0")
    k.wait(vm="w1b")
    k.e("s_barrier")

    def wread(ks, T, reg):
        for sec in range(2):
            k.lg(f"{TR} {v(reg + 2 * sec, 2)}, {v(AD + T)} offset:{4096 * (ks >> 1) + 1024 * (ks & 1) + 2048 * sec}", f"w{ks}_{T}")

    def p1reg(ks, T):
        return WB + 12 * (ks % 3) + 4 * T

    poll(k, sF, "p3", VPO, lim=7)
    k.stamp("wait3")
    retry = k.lab("retry_d")
    k.label(retry)

    def side_loads():
        k.e(f"s_lshl_b32 {s(sT0)}, {s(sG)}, 2")
        k.e(f"s_add_u32 {s(sT0)}, {s(sT0)}, {s(sWV)}")
        k.e(f"s_lshl_b32 {s(sT0)}, {s(sT0)}, 12")
        k.e(f"s_add_u32 {s(sT0)}, {s(sT0)}, {hex(WS_ST)}")
        k.e(f"s_lshl_b32 {s(sT2)}, {s(sM)}, 11")
        k.e(f"s_add_u32 {s(sT2)}, {s(sT2)}, {hex(WS_CA)}")
        k.e(f"v_lshlrev_b32 {v(VT)}, 4, {v(T32)}")
        for i in range(4):
            k.vm(f"buffer_load_dwordx4 {v(ST + 4 * i, 4)}, {v(VL16 if i < 3 else VT)}, {s(R_WS, 4)}, {s(sT0)} offen offset:{1024 * i} sc1")
        for T in range(4):
            k.vm(f"buffer_load_dwordx4 {v(CAF + 4 * T, 4)}, {v(VT)}, {s(R_WS, 4)}, {s(sT2)} offen offset:{512 * T} sc1", "side")

    k.e(f"s_mov_b32 {s(sT1)}, {s(sD)}")
    for ks in range(28):
        if ks and ks % 4 == 0:
            k.e(f"s_add_u32 {s(sT1)}, {s(sT1)}, 4096")
        k.vm(f"buffer_load_dwordx4 {v(HFR + 4 * ks, 4)}, {v(VL16)}, {s(R_WS, 4)}, {s(sT1)} offen offset:{1024 * (ks % 4)} sc1", f"hf{ks}")
        if ks == 1:
            for kk in range(2):
                for T in range(3):
                    wread(kk, T, p1reg(kk, T))
        if ks == OPT["side_at"]:
            side_loads()
    hooks("d_loads")

    def stats():
        top, ok = k.lab("sidew"), k.lab("sideok")
        k.wait(vm="side")
        k.e(f"s_mov_b32 {s(sT3)}, {POLL_MAX}")
        k.label(top)
        k.e(f"v_xor_b32 {v(VT)}, {v(ST + 2)}, {v(VTAG)}")
        for r in [ST + 6, ST + 10, ST + 14] + [CAF + 4 * T + 3 for T in range(4)]:
            k.e(f"v_xor_b32 {v(VT2)}, {v(r)}, {v(VTAG)}")
            k.e(f"v_or_b32 {v(VT)}, {v(VT)}, {v(VT2)}")
        k.e(f"v_cmp_ne_u32 vcc, 0, {v(VT)}")
        k.e(f"s_cbranch_vccz {ok}")
        k.e(f"s_sub_u32 {s(sT3)}, {s(sT3)}, 1")
        k.e(f"s_cbranch_scc1 {ok}")
        nvm, tags = k.nvm, dict(k.vmtag)
        side_loads()
        k.nvm, k.vmtag = nvm, tags
        k.e("s_waitcnt vmcnt(0)")
        k.e(f"s_branch {top}")
        k.label(ok)
        k.e(f"v_cmp_gt_u32 vcc, 32, {v(LANE)}")
        k.e(f"v_cndmask_b32 {v(ST + 12)}, 0, {v(ST + 12)}, vcc")
        k.e(f"v_cndmask_b32 {v(ST + 13)}, 0, {v(ST + 13)}, vcc")
        k.e(f"v_pk_add_f32 {v(ST, 2)}, {v(ST, 2)}, {v(ST + 4, 2)}")
        k.e(f"v_pk_add_f32 {v(ST + 8, 2)}, {v(ST + 8, 2)}, {v(ST + 12, 2)}")
        k.e(f"v_pk_add_f32 {v(ST, 2)}, {v(ST, 2)}, {v(ST + 8, 2)}")
        for T in range(4):
            k.e(f"v_mov_b32 {v(CAF + 4 * T + 3)}, 0")
        S, Q, E, SD = ST, ST + 1, ST + 2, ST + 3
        k.e(f"v_permlane32_swap_b32 {v(S)}, {v(Q)}")
        k.e(f"v_add_f32 {v(S)}, {v(S)}, {v(Q)}")
        k.e(f"v_mov_b32 {v(Q)}, {v(S)}")
        k.e(f"v_permlane32_swap_b32 {v(S)}, {v(Q)}")
        k.e(f"v_mul_f32 {v(S)}, {f32bits(-1.0 / 448)}, {v(S)}")
        k.e(f"v_mul_f32 {v(Q)}, {f32bits(1.0 / 448)}, {v(Q)}")
        k.e(f"v_fma_f32 {v(Q)}, -{v(S)}, {v(S)}, {v(Q)}")
        k.e(f"v_max_f32 {v(Q)}, 0, {v(Q)}")
        k.e(f"v_add_f32 {v(E)}, {f32bits(1e-5)}, {v(Q)}")
        k.e(f"v_sqrt_f32 {v(SD)}, {v(E)}")
        k.e(f"v_rcp_f32 {v(E)}, {v(E)}")
        k.e(f"v_cvt_pk_bf16_f32 {v(CB)}, {v(S)}, {v(S)}")
        k.e(f"v_lshlrev_b32 {v(VT)}, 16, {v(CB)}")
        k.e(f"v_sub_f32 {v(VT)}, {v(S)}, {v(VT)}")
        k.e(f"v_cvt_pk_bf16_f32 {v(CB + 1)}, {v(VT)}, {v(SD)}")
        k.e(f"v_and_b32 {v(VT)}, 0xffff0000, {v(CB + 1)}")
        k.e(f"v_sub_f32 {v(VT)}, {v(SD)}, {v(VT)}")
        k.e(f"v_cvt_pk_bf16_f32 {v(CB + 2)}, {v(VT)}, 0")
        for r in range(3):
            k.e(f"v_cndmask_b32 {v(CB + r)}, 0, {v(CB + r)}, vcc")
        k.e(f"s_lshl_b32 {s(sT0)}, {s(sWV)}, 8")
        k.e(f"s_add_u32 {s(sT0)}, {s(sT0)}, {L_RS}")
        k.e(f"v_lshl_add_u32 {v(VT)}, {v(LANE)}, 2, {s(sT0)}")
        k.lg(f"ds_write_b32 {v(VT)}, {v(E)}")

    P2 = [WB + 4 * i for i in range(9)]
    for ks in range(28):
        k.wait(vm=f"hf{ks}", lg=f"w{ks}_2")
        for T in range(3):
            k.e(f"{M32} {v(ACC + 16 * T, 16)}, {v(p1reg(ks, T), 4)}, {v(HFR + 4 * ks, 4)}, {'0' if ks == 0 else v(ACC + 16 * T, 16)}")
            if ks + 2 < 28:
                wread(ks + 2, T, p1reg(ks + 2, T))
            if T == 0:
                csum(k, CS, range(HFR + 4 * ks, HFR + 4 * ks + 4), ks == 0)
        if ks == OPT["stats_at"]:
            stats()
    base = 3 * (25 % 3)

    def p2reg(ks):
        return P2[(base + ks) % 9]

    for ks in range(3):
        wread(ks, 3, p2reg(ks))
    verify(k, CS, [PL], 56, retry)
    k.stamp("d_p1")
    for ks in range(3, 8):
        wread(ks, 3, p2reg(ks))
    k.e(f"s_lshl_b32 {s(sT0)}, {s(sG)}, 2")
    k.e(f"s_add_u32 {s(sT0)}, {s(sT0)}, {s(sWV)}")
    k.e(f"s_mul_i32 {s(sD)}, {s(sT0)}, 114688")
    k.e(f"s_lshl_b32 {s(sT1)}, {s(sM)}, 13")
    k.e(f"s_add_u32 {s(sD)}, {s(sD)}, {s(sT1)}")
    k.e(f"s_add_u32 {s(sD)}, {s(sD)}, {hex(WS_H1)}")
    k.e(f"s_add_u32 {s(sT2)}, {s(sD)}, 4096")
    k.e(f"s_lshl_b32 {s(sF)}, {s(sG)}, 13")
    k.e(f"s_mul_i32 {s(sT0)}, {s(sWV)}, 448")
    k.e(f"s_add_u32 {s(sF)}, {s(sF)}, {s(sT0)}")
    k.e(f"s_lshl_b32 {s(sT0)}, {s(sM)}, 5")
    k.e(f"s_add_u32 {s(sF)}, {s(sF)}, {s(sT0)}")
    k.e(f"s_add_u32 {s(sF)}, {s(sF)}, {hex(WS_F4)}")
    k.e(f"s_add_u32 {s(sT1)}, {s(sF)}, 4096")
    R2 = PL

    def epilogue(T):
        A = ACC + 16 * T
        ops = []
        for hh in range(2):
            for i in range(8 * hh, 8 * hh + 8):
                ops.append(f"v_max_f32 {v(A + i)}, 0, {v(A + i)}")
            for i in range(8 * hh, 8 * hh + 8, 2):
                ops.append(f"v_pk_mul_f32 {v(A + i, 2)}, {v(A + i, 2)}, {v(A + i, 2)}")
            for i in range(4 * hh, 4 * hh + 4):
                ops.append(f"v_cvt_pk_bf16_f32 {v(A + i)}, {v(A + 2 * i)}, {v(A + 2 * i + 1)}")
            kl = 2 * T + hh
            ops.append(("vm", f"buffer_store_dwordx4 {v(A + 4 * hh, 4)}, {v(VL16)}, {s(R_WS, 4)}, {s(sD if kl < 4 else sT2)} offen offset:{1024 * (kl % 4)} sc1"))
            dst = (VTAG + 1 if kl < 3 else R2 + 1) if kl < 6 else (VTAG + 1 if kl == 6 else R2 + 1)
            r = list(range(A + 4 * hh, A + 4 * hh + 4))
            if kl in (0, 3, 6, 7):
                ops.append(f"v_add_u32 {v(dst)}, {v(r[0])}, {v(r[1])}")
            else:
                ops.append(f"v_add3_u32 {v(dst)}, {v(r[0])}, {v(r[1])}, {v(dst)}")
            ops.append(f"v_add3_u32 {v(dst)}, {v(r[2])}, {v(r[3])}, {v(dst)}")
        return ops

    def emit(op):
        if isinstance(op, tuple):
            if op[0] == "vm":
                k.vm(op[1])
            else:
                op[1]()
        else:
            k.e(op)

    def recs(soff):
        row_sum(k, [VTAG + 1, R2 + 1])
        record(k, VTAG, VFR, soff)
        record(k, R2, VFR, soff, 2048)

    for T in range(3):
        k.e(f"{M32} {v(ACC + 16 * T, 16)}, {v(CAF + 4 * T, 4)}, {v(CB, 4)}, {v(ACC + 16 * T, 16)}")
    k.e(f"v_mov_b32 {v(R2)}, {v(VTAG)}")
    fill = epilogue(0) + epilogue(1) + epilogue(2) + [("fn", lambda: recs(sF)), ("fn", lambda: k.stamp("flag4e"))]
    per = OPT["d_fill"]
    for ks in range(28):
        k.wait(lg=f"w{ks}_3")
        k.e(f"{M32} {v(ACC + 48, 16)}, {v(p2reg(ks), 4)}, {v(HFR + 4 * ks, 4)}, {'0' if ks == 0 else v(ACC + 48, 16)}")
        if ks >= 1 and ks + 7 < 28:
            wread(ks + 7, 3, p2reg(ks + 7))
        for _ in range(per):
            if fill:
                emit(fill.pop(0))
    k.e(f"{M32} {v(ACC + 48, 16)}, {v(CAF + 12, 4)}, {v(CB, 4)}, {v(ACC + 48, 16)}")
    while fill:
        emit(fill.pop(0))
    for op in epilogue(3):
        emit(op)
    recs(sT1)
    k.stamp("flag4l")


def phase_e(k, hooks):
    VH, CS, VB2, HF1, ACC, PL2 = 10, 14, 15, 16, 184, 12
    RES, HR, BF, ON1, XB, RS = 72, 88, 96, 100, 104, 152
    k.e(f"s_lshl_b32 {s(sF)}, {s(sG)}, 13")
    k.e(f"s_and_b32 {s(sT3)}, {s(sWV)}, 1")
    k.e(f"s_lshl_b32 {s(sT0)}, {s(sT3)}, 11")
    k.e(f"s_add_u32 {s(sF)}, {s(sF)}, {s(sT0)}")
    k.e(f"s_mul_i32 {s(sT0)}, {s(sUH)}, 896")
    k.e(f"s_add_u32 {s(sF)}, {s(sF)}, {s(sT0)}")
    k.e(f"s_lshr_b32 {s(sT2)}, {s(sWV)}, 1")
    k.e(f"s_mul_i32 {s(sT0)}, {s(sT2)}, 224")
    k.e(f"s_add_u32 {s(sF)}, {s(sF)}, {s(sT0)}")
    k.e(f"s_add_u32 {s(sF)}, {s(sF)}, {hex(WS_F4)}")
    k.e(f"v_min_u32 {v(VPO)}, 55, {v(LANE)}")
    k.e(f"v_lshlrev_b32 {v(VPO)}, 3, {v(VPO)}")
    k.e(f"v_add_u32 {v(VT)}, 224, {v(VPO)}")
    k.e(f"v_cmp_le_u32 vcc, 28, {v(LANE)}")
    k.e(f"v_cndmask_b32 {v(VPO)}, {v(VPO)}, {v(VT)}, vcc")
    poll_issue(k, sF, "p4", VPO)
    sE, sL, sFL = sW2, sW2L, sSZ
    k.e(f"s_mul_i32 {s(sD)}, {s(sTT0)}, 114688")
    k.e(f"s_mul_i32 {s(sT0)}, {s(sT2)}, 57344")
    k.e(f"s_add_u32 {s(sD)}, {s(sD)}, {s(sT0)}")
    k.e(f"s_add_u32 {s(sD)}, {s(sD)}, {hex(WS_H1)}")
    k.e(f"s_mul_i32 {s(sT0)}, {s(sT3)}, 3072")
    k.e(f"s_add_u32 {s(sE)}, {s(sD)}, {s(sT0)}")
    k.e(f"s_lshl_b32 {s(sT0)}, {s(sT3)}, 10")
    k.e(f"s_add_u32 {s(sL)}, {s(sD)}, {s(sT0)}")
    k.e(f"s_add_u32 {s(sL)}, {s(sL)}, 6144")
    k.e(f"s_add_u32 {s(sFL)}, {s(sF)}, 4096")
    k.e(f"s_mul_i32 {s(sT0)}, {s(sT2)}, 114688")
    k.e(f"v_add_u32 {v(VH)}, {s(sT0)}, {v(VL16)}")
    k.e(f"s_sub_u32 {s(sT0)}, 114688, {s(sT0)}")
    k.e(f"v_add_u32 {v(VH + 1)}, {s(sT0)}, {v(VL16)}")
    srd(k, R_M, P_B2, 896)
    k.e(f"s_lshl_b32 {s(sT0)}, {s(sT3)}, 6")
    k.e(f"s_add_u32 {s(sT0)}, {s(sT0)}, {s(sCB)}")
    k.e(f"v_lshlrev_b32 {v(VT)}, 1, {v(T32)}")
    k.e(f"v_lshl_add_u32 {v(VT)}, {v(HF)}, 30, {v(VT)}")
    k.vm(f"buffer_load_ushort {v(VB2)}, {v(VT)}, {s(R_M, 4)}, {s(sT0)} offen")
    k.wait(lg="all")
    k.e("s_barrier")
    poll(k, sF, "p4", VPO, lim=7)
    k.stamp("wait4")
    retry = k.lab("retry_e")
    k.label(retry)

    def hload(sl, reg):
        if sl < 21:
            if sl % 3 == 0:
                k.e(f"s_add_u32 {s(sT1)}, {s(sE)}, {8192 * (sl // 3)}")
            off = 1024 * (sl % 3)
        else:
            k.e(f"s_add_u32 {s(sT1)}, {s(sL)}, {8192 * (sl - 21)}")
            off = 0
        for u in range(2):
            k.vm(f"buffer_load_dwordx4 {v(reg + 4 * u, 4)}, {v(VH + u)}, {s(R_WS, 4)}, {s(sT1)} offen offset:{off} sc1", f"h1_{sl}")

    LP = OPT["lp_at"]
    for sl in range(21):
        hload(sl, HF1 + 8 * sl)
        if sl == LP - 1:
            poll_issue(k, sFL, "p5", VPO, PL2)
    top, done = k.lab("rest"), k.lab("restd")
    k.label(top)
    k.e(f"s_cmp_ge_u32 {s(sNB)}, 7")
    k.e(f"s_cbranch_scc1 {done}")
    k.e(f"s_call_b64 {s(sLNK, 2)}, L_batch")
    k.e(f"s_branch {top}")
    k.label(done)
    k.stamp("e_rest")

    def mm(sl, reg, vt, first):
        u, nt = vt >> 1, vt & 1
        acc = v(ACC + 16 * vt, 16)
        k.e(f"{M32} {acc}, {a(8 * sl + 4 * nt, 4)}, {v(reg + 4 * u, 4)}, {'0' if first else acc}")

    for sl in range(21):
        k.wait(vm=f"h1_{sl}")
        for vt in range(4):
            mm(sl, HF1 + 8 * sl, vt, sl == 0)
            if vt < 2:
                r = HF1 + 8 * sl + 4 * vt
                csum(k, CS, range(r, r + 4), sl == 0 and vt == 0)
        if sl == LP - 1:
            poll(k, sFL, "p5", VPO, PL2)
            k.stamp("wait5")
            for i in range(7):
                hload(21 + i, HF1 + 8 * i)
        if sl == 15:
            k.e(f"s_lshl_b32 {s(sT0)}, {s(sWV)}, 11")
            k.e(f"s_add_u32 {s(sT0)}, {s(sT0)}, {L_HRES}")
            k.e(f"v_add_u32 {v(VT)}, {s(sT0)}, {v(VL16)}")
            k.lg(f"ds_read_b128 {v(HR, 4)}, {v(VT)}")
            k.lg(f"ds_read_b128 {v(HR + 4, 4)}, {v(VT)} offset:1024", "hr")
            k.e(f"s_lshr_b32 {s(sT0)}, {s(sWV)}, 1")
            k.e(f"s_lshl_b32 {s(sT2)}, {s(sUH)}, 1")
            k.e(f"s_add_u32 {s(sT0)}, {s(sT0)}, {s(sT2)}")
            k.e(f"s_lshl_b32 {s(sT0)}, {s(sT0)}, 8")
            k.e(f"s_add_u32 {s(sT0)}, {s(sT0)}, {L_RS}")
            k.e(f"v_lshl_add_u32 {v(VT)}, {v(LANE)}, 2, {s(sT0)}")
            k.e(f"v_mov_b32 {v(BF)}, {v(VB2)}")
            k.e(f"v_mov_b32 {v(ON1)}, 0x3f80")
            for r in range(1, 4):
                k.e(f"v_mov_b32 {v(BF + r)}, 0")
                k.e(f"v_mov_b32 {v(ON1 + r)}, 0")
        if sl == 16:
            k.wait(lg="hr")
            for e in range(2):
                for d in range(4):
                    i = 4 * e + 8 * (d >> 1) + 2 * (d & 1)
                    k.e(f"v_lshlrev_b32 {v(RES + i)}, 16, {v(HR + 4 * e + d)}")
                    k.e(f"v_and_b32 {v(RES + i + 1)}, 0xffff0000, {v(HR + 4 * e + d)}")
        if sl == 17:
            k.e(f"{M32} {v(RES, 16)}, {v(BF, 4)}, {v(ON1, 4)}, {v(RES, 16)}")
        if sl == 18:
            k.lg(f"ds_read_b32 {v(RS)}, {v(VT)}", "rs")
            for vt in range(1, 4):
                k.e(f"s_xor_b32 {s(sT0)}, {s(sWV)}, {vt}")
                k.e(f"s_mul_i32 {s(sT0)}, {s(sT0)}, 12288")
                k.e(f"s_add_u32 {s(sT0)}, {s(sT0)}, {L_XCH + 4096 * (vt - 1)}")
                k.e(f"v_add_u32 {v(HR + vt)}, {s(sT0)}, {v(VL16)}")
            k.e(f"s_mul_i32 {s(sT0)}, {s(sWV)}, 12288")
            k.e(f"s_add_u32 {s(sT0)}, {s(sT0)}, {L_XCH}")
            k.e(f"v_add_u32 {v(HR)}, {s(sT0)}, {v(VL16)}")
    k.stamp("e_early")
    for n, vt in enumerate((1, 2, 3, 0)):
        for i in range(7):
            if n == 0:
                k.wait(vm=f"h1_{21 + i}")
            mm(21 + i, HF1 + 8 * i, vt, False)
            if n == 0:
                csum(k, CS, range(HF1 + 8 * i, HF1 + 8 * i + 8), False)
            elif 2 <= i < 6:
                pv = (1, 2, 3, 0)[n - 1]
                k.lg(f"ds_write_b128 {v(HR + pv)}, {v(ACC + 16 * pv + 4 * (i - 2), 4)} offset:{1024 * (i - 2)}")
        if n == 0:
            verify(k, CS, [PL, PL2], 56, retry)
        if n == 2:
            srd(k, R_M, P_OUT, SZ_ACT)
            k.e(f"s_lshr_b32 {s(sT0)}, {s(sWV)}, 1")
            k.e(f"s_add_u32 {s(sT0)}, {s(sT0)}, {s(sTT0)}")
            k.e(f"s_mul_i32 {s(sT0)}, {s(sT0)}, 28672")
            k.e(f"s_add_u32 {s(sT0)}, {s(sT0)}, {s(sCB)}")
            k.e(f"s_and_b32 {s(sT1)}, {s(sWV)}, 1")
            k.e(f"s_lshl_b32 {s(sT1)}, {s(sT1)}, 6")
            k.e(f"s_add_u32 {s(sT0)}, {s(sT0)}, {s(sT1)}")
            k.e(f"v_mul_u32_u24 {v(VT)}, 896, {v(T32)}")
            k.e(f"v_lshl_add_u32 {v(VT)}, {v(HF)}, 4, {v(VT)}")
    k.wait(lg="all")
    k.e("s_barrier")
    k.stamp("e_mm")
    for q in range(4):
        for j in range(3):
            k.lg(f"ds_read_b128 {v(XB + 16 * j + 4 * q, 4)}, {v(HR)} offset:{4096 * j + 1024 * q}", f"x{q}")
    for q in range(4):
        k.wait(lg=f"x{q}")
        for i in (4 * q, 4 * q + 2):
            k.e(f"v_pk_add_f32 {v(XB + i, 2)}, {v(XB + i, 2)}, {v(XB + 16 + i, 2)}")
            k.e(f"v_pk_add_f32 {v(ACC + i, 2)}, {v(ACC + i, 2)}, {v(XB + 32 + i, 2)}")
        for i in (4 * q, 4 * q + 2):
            k.e(f"v_pk_add_f32 {v(ACC + i, 2)}, {v(ACC + i, 2)}, {v(XB + i, 2)}")
        for i in (4 * q, 4 * q + 2):
            k.e(f"v_pk_fma_f32 {v(ACC + i, 2)}, {v(ACC + i, 2)}, {v(RS, 2)}, {v(RES + i, 2)} op_sel_hi:[1,0,1]")
        for i in (2 * q, 2 * q + 1):
            k.e(f"v_cvt_pk_bf16_f32 {v(HF1 + i)}, {v(ACC + 2 * i)}, {v(ACC + 2 * i + 1)}")
        if q & 1:
            b = HF1 + 2 * q - 2
            k.e(f"v_permlane32_swap_b32 {v(b)}, {v(b + 2)}")
            k.e(f"v_permlane32_swap_b32 {v(b + 1)}, {v(b + 3)}")
            k.vm(f"buffer_store_dwordx4 {v(b, 4)}, {v(VT)}, {s(R_M, 4)}, {s(sT0)} offen offset:{16 * (q - 1)}")


def batch_code(k):
    k.label("L_batch")
    for b in range(1, 7):
        k.e(f"s_cmp_eq_u32 {s(sNB)}, {b}")
        k.e(f"s_cbranch_scc1 L_batch{b}")
    for b in range(7):
        if b:
            k.label(f"L_batch{b}")
        for r in range(8):
            k.e(f"ds_write_b128 {v(VST)}, {a(32 * b + 4 * r, 4)} offset:{1024 * r}")
        k.e(f"s_add_u32 {s(sNB)}, {s(sNB)}, 1")
        k.e("s_waitcnt lgkmcnt(0)")
        for kl in range(4):
            for nt in range(2):
                for sec in range(2):
                    k.e(f"{TR} {a(32 * b + 8 * kl + 4 * nt + 2 * sec, 2)}, {v(VTR + nt)} offset:{2048 * kl + 1024 * sec}")
        k.e("s_waitcnt lgkmcnt(0)")
        k.e(f"s_setpc_b64 {s(sLNK, 2)}")


def spare_wg(k):
    RAW, ID, D, B1 = 32, 96, 100, 104
    k.label("L_spare")
    k.e(f"s_lshl_b32 {s(sT0)}, {s(sG)}, 1")
    k.e(f"s_add_u32 {s(sT0)}, {s(sT0)}, {s(sM)}")
    k.e(f"s_sub_u32 {s(sT0)}, {s(sT0)}, 14")
    k.e(f"s_lshl_b32 {s(sT0)}, {s(sT0)}, 2")
    k.e(f"s_add_u32 {s(sT0)}, {s(sT0)}, {s(sWV)}")
    k.e(f"s_cmp_ge_u32 {s(sT0)}, 112")
    k.e("s_cbranch_scc1 L_end")
    srd(k, R_W, P_W1, 448 * 3584)
    srd(k, R_M, P_B1, 3584)
    k.e(f"s_lshl_b32 {s(sT1)}, {s(sT0)}, 5")
    k.e(f"v_lshrrev_b32 {v(VT)}, 1, {v(LANE)}")
    k.e(f"v_mul_u32_u24 {v(VT)}, 3584, {v(VT)}")
    k.e(f"v_and_b32 {v(VT2)}, 1, {v(LANE)}")
    k.e(f"v_lshl_add_u32 {v(VT)}, {v(VT2)}, 4, {v(VT)}")
    k.e(f"s_mov_b32 {s(sT2)}, {s(sT1)}")
    for i in range(14):
        if i:
            k.e(f"s_add_u32 {s(sT2)}, {s(sT2)}, {32 * 3584}")
        k.e(f"buffer_load_dwordx4 {v(RAW + 4 * i, 4)}, {v(VT)}, {s(R_W, 4)}, {s(sT2)} offen")
    F = 10
    k.e(f"v_lshlrev_b32 {v(F)}, 3, {v(VT2)}")
    k.e(f"v_bfe_u32 {v(VT)}, {v(LANE)}, 4, 1")
    k.e(f"v_lshl_add_u32 {v(F)}, {v(VT)}, 2, {v(F)}")
    k.e(f"v_bfe_u32 {v(VT)}, {v(LANE)}, 1, 2")
    k.e(f"v_add_u32 {v(F)}, {v(F)}, {v(VT)}")
    k.e(f"v_lshlrev_b32 {v(VT)}, 1, {v(F)}")
    k.e(f"buffer_load_ushort {v(B1)}, {v(VT)}, {s(R_M, 4)}, {s(sT1)} offen")
    k.e(f"v_and_b32 {v(VT)}, 15, {v(LANE)}")
    k.e(f"v_mov_b32 {v(VT2)}, 0x3f80")
    k.e(f"v_mov_b32 {v(F + 1)}, 0x3f800000")
    for r in range(4):
        k.e(f"v_cmp_eq_u32 vcc, {2 * r}, {v(VT)}")
        k.e(f"v_cndmask_b32 {v(ID + r)}, 0, {v(VT2)}, vcc")
        k.e(f"v_cmp_eq_u32 vcc, {2 * r + 1}, {v(VT)}")
        k.e(f"v_cndmask_b32 {v(ID + r)}, {v(ID + r)}, {v(F + 1)}, vcc")
    for i in range(14):
        k.e(f"s_waitcnt vmcnt({14 - i})")
        k.e(f"{M16} {v(D, 4)}, {v(ID, 4)}, {v(RAW + 4 * i, 4)}, {'0' if i == 0 else v(D, 4)}")
    for sh in (2, 4, 8):
        for r in range(4):
            k.e(f"v_add_f32_dpp {v(D + r)}, {v(D + r)}, {v(D + r)} row_ror:{sh} {DPP}")
    for lv, msk in enumerate((0xCCCCCCCC, 0xF0F0F0F0)):
        k.e(f"s_mov_b32 {s(sMK)}, {hex(msk)}")
        k.e(f"s_mov_b32 {s(sMK + 1)}, {hex(msk)}")
        for j in range(0, 4, 2 << lv):
            k.e(f"v_cndmask_b32 {v(D + j)}, {v(D + j)}, {v(D + j + (1 << lv))}, {s(sMK, 2)}")
    G = 108
    k.e(f"v_cvt_pk_bf16_f32 {v(G + 1)}, {v(D)}, 0")
    k.e(f"v_lshlrev_b32 {v(VT)}, 16, {v(G + 1)}")
    k.e(f"v_sub_f32 {v(VT)}, {v(D)}, {v(VT)}")
    k.e(f"v_cvt_pk_bf16_f32 {v(G)}, {v(D)}, {v(VT)}")
    k.e("s_waitcnt vmcnt(0)")
    k.e(f"v_lshl_or_b32 {v(G + 1)}, {v(B1)}, 16, {v(G + 1)}")
    k.e(f"v_mov_b32 {v(G + 2)}, {v(B1)}")
    k.e(f"v_mov_b32 {v(G + 3)}, {v(VTAG)}")
    k.e(f"v_lshlrev_b32 {v(VT)}, 4, {v(F)}")
    k.e(f"s_lshl_b32 {s(sT1)}, {s(sT0)}, 8")
    k.e(f"s_add_u32 {s(sT1)}, {s(sT1)}, {hex(WS_CA)}")
    k.e("s_mov_b64 exec, 0xffffffff")
    k.e(f"buffer_store_dwordx4 {v(G, 4)}, {v(VT)}, {s(R_WS, 4)}, {s(sT1)} offen sc1")
    k.e("s_endpgm")


def stamp_flush(k):
    if not k.prof:
        return
    k.stamp("end")
    k.stamp("rend", True)
    k.e("s_mov_b64 exec, 1")
    srd(k, R_M, P_WS, 0x400000, WS_PROF)
    k.e(f"s_lshl_b32 {s(sT0)}, s2, 2")
    k.e(f"s_add_u32 {s(sT0)}, {s(sT0)}, {s(sWV)}")
    k.e(f"s_lshl_b32 {s(sT0)}, {s(sT0)}, 7")
    for i in range(k.nstamp):
        k.e(f"v_mov_b32 {v(VT)}, {s(k.STAMP0 + i)}")
        k.e(f"buffer_store_dword {v(VT)}, {v(VZ)}, {s(R_M, 4)}, {s(sT0)} offen offset:{4 * i}")
    k.e(f"v_mov_b32 {v(VT)}, {k.nstamp}")
    k.e(f"buffer_store_dword {v(VT)}, {v(VZ)}, {s(R_M, 4)}, {s(sT0)} offen offset:124")


def build(path, prof=False):
    k = MK(NAME + "_kernel", prof)

    def hooks(name):
        if name == "a_chunk4":
            k.vm(f"buffer_load_dword {v(VTAG)}, {v(VZ)}, {s(R_M, 4)}, 0 offen sc1", "tag")
            for i in range(7):
                w_dma(k, i, (0,), L_WQ + 4096 * i, "wq")
        if name == "a_chunk5":
            k.e(f"s_and_b32 {s(sT0)}, {s(sSZ)}, {448 * 896}")
            srd(k, R_C, P_WO, s(sT0))
            k.e(f"v_lshrrev_b32 {v(VT)}, 1, {v(LANE)}")
            k.e(f"v_lshrrev_b32 {v(VT2)}, 4, {v(LANE)}")
            k.e(f"v_xor_b32 {v(VT)}, {v(VT)}, {v(VT2)}")
            k.e(f"v_and_b32 {v(VT)}, 3, {v(VT)}")
            k.e(f"v_lshlrev_b32 {v(VT)}, 5, {v(VT)}")
            k.e(f"v_and_b32 {v(VT2)}, 1, {v(LANE)}")
            k.e(f"v_lshl_add_u32 {v(VT)}, {v(VT2)}, 4, {v(VT)}")
            k.e(f"v_lshrrev_b32 {v(VT2)}, 3, {v(LANE)}")
            k.e(f"v_mul_u32_u24 {v(VT2)}, 896, {v(VT2)}")
            k.e(f"v_add_u32 {v(VXE)}, {v(VT2)}, {v(VT)}")
            img_dma(k, VXE, R_C, sCB, 8 * 896, L_WO, "wo")
            k.e(f"v_and_b32 {v(VT)}, 15, {v(LANE)}")
            k.e(f"v_mul_u32_u24 {v(VT)}, 896, {v(VT)}")
            k.e(f"v_add_u32 {v(VXO)}, {v(VT)}, {v(VFR)}")
            k.e(f"s_lshl_b32 {s(sT0)}, {s(sTT0)}, 1")
            k.e(f"s_add_u32 {s(sT0)}, {s(sT0)}, {s(sWV)}")
            k.e(f"s_mul_i32 {s(sT0)}, {s(sT0)}, 14336")
            k.e(f"s_add_u32 {s(sT0)}, {s(sT0)}, {s(sCB)}")
            for nt in range(4):
                k.vm(f"buffer_load_dwordx2 {v(XRES + 2 * nt, 2)}, {v(VXO)}, {s(R_X, 4)}, {s(sT0)} offen offset:{32 * nt}")
        if name.startswith("a_sm") and 10 <= int(name[4:]) < 22:
            w2_loads(k, int(name[4:]) - 10, int(name[4:]) - 9)
        if name.startswith("q_mm") and int(name[4:]) in (2, 5, 8, 11):
            n = 12 + int(name[4:]) // 3
            w2_loads(k, n, n + 1)
        if name == "b_loads":
            w2_loads(k, 16, 24)
        if name == "c_loads":
            w2_loads(k, 24, 28)

    prologue(k)
    if prof:
        k.stamp("rstart", True)
        k.stamp("start")
    phase_a(k, hooks)
    phase_b(k, hooks)
    k.e(f"s_cmp_ge_u32 {s(sM)}, 14")
    k.e("s_cbranch_scc1 L_spare")
    phase_c(k, hooks)
    if OPT["stop"] >= 2:
        phase_d(k, hooks)
    if OPT["stop"] >= 3:
        phase_e(k, hooks)
    stamp_flush(k)
    k.label("L_end")
    k.e("s_endpgm")
    batch_code(k)
    spare_wg(k)
    ref = open(f"cdna_kernels/{NAME}.s.ref").read().split("\n")
    head = [l for l in ref if l.startswith(";") and "@launch" not in l and "Override launch" not in l
            and "grid=ceil" not in l]
    out = head[:]
    out.append("; @launch grid=(256,1,1) block=(256,1,1) lds=163840")
    out.append('.amdgcn_target "amdgcn-amd-amdhsa--gfx950"')
    out.append(".text")
    out.append(k.text())
    out.append('.section .rodata,"a"')
    k.maxv = 256
    k.maxa = 255
    out.append(k.descriptor())
    open(path, "w").write("\n".join(out))
    if prof:
        open(path + ".stamps", "w").write(" ".join(k.stamp_names))


if __name__ == "__main__":
    for o in sys.argv[2:]:
        if "=" in o:
            OPT[o.split("=")[0]] = int(o.split("=")[1])
    build(sys.argv[1], "prof" in sys.argv[2:])
```

```python
import sys
from asmlib import v, a, s
from mklib import MK, srd, softmax_pair, ln_stats, f32bits, LOG2E, M32, M16, TR

NAME = "sequential_preLN__linear_kernel_hedgehog__dense_activation_squared_relu__prompt"

WS_KVP, WS_O, WS_H, WS_H1 = 0x000000, 0x100000, 0x300000, 0x500000
WS_F1, WS_F2, WS_F3, WS_F4 = 0xC00000, 0xC10000, 0xC20000, 0xC30000
WS_ST, WS_CA = 0xC80000, 0xCC0000
WS_SIZE = 0x1000000
WS_PROF = 0x2000000
SZ_ACT = 2048 * 448 * 2
POLL_MAX = 20000

XS = [57344, 73728, 90112, 16384, 114688, 131072, 0]
WA = [49152, 106496, 32768, 40960, 147456, 155648, 49152]
L_WQ, L_CS, L_PHI, L_V, L_KVF = 16384, 45056, 0, 49152, 114688
L_W1A, L_WO, L_W1B = 0, 57344, 57344
L_RS, L_STG, L_HRES, L_XCH = 114688, 118784, 151552, 0

P_X, P_WQKV, P_WPHI, P_WO, P_W1, P_B1, P_W2, P_B2, P_OUT, P_DBG, P_WS = 4, 6, 8, 10, 12, 14, 16, 18, 20, 22, 24
TAG = 26
R_X, R_W, R_C, R_WS, R_W2, R_M = 28, 32, 36, 40, 44, 48
sWV, sGA, sH, sG, sM = 52, 53, 54, 55, 56
sC = 57
sT0, sT1, sT2, sT3, sXB, sWB = 64, 65, 66, 67, 68, 69
sMK = 100
sRT, sCB, sUH, sTT0, sNB, sW2L, sSZ, sW2, sLNK = 3, 4, 5, 6, 7, 8, 9, 27, 62
RETRY_MAX = 8
OPT = dict(la=3, wphi_at=2, ack=0, stop=9, dbg=0, lim2=6, side_at=13, stats_at=18, d_fill=4, lp_at=14)

LANE, VT, VT2, VXE, VXO, VW, HF, T32, VL16 = 1, 2, 3, 4, 5, 6, 7, 8, 9
XR, WR, WC = 10, 14, 15
S0, S1, Q0, Q1, SC, RSTD = 16, 17, 18, 19, 20, 22
ONES, CORB, X = 24, 28, 32
ACK, ACV, WF = 144, 160, 176
PHR, WPF, XRES, PL, VPO, VZ, VTAG = 128, 232, 240, 248, 250, 251, 252
sF, sD = 68, 69
TRR, TRC = 254, 255
ACS_K, ACS_V = 224, 240
VW2A, VW2B, VFR = 21, 23, 0
VST, VTR = 4, 5
DPP = "row_mask:0xf bank_mask:0xf"
BIG = 0x40000000


def poll(k, soff, tag, voff, pl=PL, lim=0):
    top, done = k.lab("poll"), k.lab("pdone")
    k.wait(vm=tag)
    k.e(f"s_mov_b32 {s(sT3)}, {POLL_MAX}")
    k.label(top)
    k.e(f"v_cmp_ne_u32 vcc, {s(TAG)}, {v(pl)}")
    k.e(f"s_cbranch_vccz {done}")
    k.e(f"s_sub_u32 {s(sT3)}, {s(sT3)}, 1")
    k.e(f"s_cbranch_scc1 {done}")
    k.e(f"buffer_load_dwordx2 {v(pl, 2)}, {v(voff)}, {s(R_WS, 4)}, {s(soff)} offen sc1")
    if lim:
        skip = k.lab("nob")
        k.e(f"s_cmp_ge_u32 {s(sNB)}, {lim}")
        k.e(f"s_cbranch_scc1 {skip}")
        k.e(f"s_call_b64 {s(sLNK, 2)}, L_batch")
        k.label(skip)
    k.e("s_waitcnt vmcnt(0)")
    k.e(f"s_branch {top}")
    k.label(done)


def poll_issue(k, soff, tag, voff, pl=PL):
    k.vm(f"buffer_load_dwordx2 {v(pl, 2)}, {v(voff)}, {s(R_WS, 4)}, {s(soff)} offen sc1", tag)


def csum(k, dst, regs, first=True):
    regs = list(regs)
    if first:
        k.e(f"v_add_u32 {v(dst)}, {v(regs[0])}, {v(regs[1])}")
        regs = regs[2:]
    for i in range(0, len(regs), 2):
        k.e(f"v_add3_u32 {v(dst)}, {v(regs[i])}, {v(regs[i + 1])}, {v(dst)}")


def row_sum(k, regs):
    for sh in (8, 4, 2, 1):
        for r in regs:
            k.e(f"v_add_u32_dpp {v(r)}, {v(r)}, {v(r)} row_ror:{sh} {DPP}")


def record(k, rec, voff, soff, off=0):
    if OPT["ack"]:
        k.wait(vm="all")
    k.vm(f"buffer_store_dwordx2 {v(rec, 2)}, {v(voff)}, {s(R_WS, 4)}, {s(soff)} offen offset:{off} sc1")


def verify(k, acc, pls, nvalid, retry):
    if nvalid < 64:
        k.e(f"v_cmp_gt_u32 vcc, {nvalid}, {v(LANE)}")
    for pl in pls:
        if nvalid < 64:
            k.e(f"v_cndmask_b32 {v(VT)}, 0, {v(pl + 1)}, vcc")
            k.e(f"v_sub_u32 {v(acc)}, {v(acc)}, {v(VT)}")
        else:
            k.e(f"v_sub_u32 {v(acc)}, {v(acc)}, {v(pl + 1)}")
    row_sum(k, [acc])
    for i, sr in enumerate((sT0, sT1, sT2, sT3)):
        k.e(f"v_readlane_b32 {s(sr)}, {v(acc)}, {16 * i}")
    k.e(f"s_add_u32 {s(sT0)}, {s(sT0)}, {s(sT1)}")
    k.e(f"s_add_u32 {s(sT2)}, {s(sT2)}, {s(sT3)}")
    k.e(f"s_add_u32 {s(sT0)}, {s(sT0)}, {s(sT2)}")
    ok = k.lab("vok")
    k.e(f"s_cmp_eq_u32 {s(sT0)}, 0")
    k.e(f"s_cbranch_scc1 {ok}")
    k.e(f"s_sub_u32 {s(sRT)}, {s(sRT)}, 1")
    k.e(f"s_cbranch_scc0 {retry}")
    k.label(ok)


def w2_loads(k, lo, hi):
    for sl in range(lo, hi):
        if sl < 21:
            k.e(f"s_add_u32 {s(sT3)}, {s(sW2)}, {(8 * (sl // 3) + sl % 3) * 14336}")
        else:
            k.e(f"s_add_u32 {s(sT3)}, {s(sW2L)}, {8 * (sl - 21) * 14336}")
        k.vm(f"buffer_load_dwordx4 {a(8 * sl, 4)}, {v(VW2A)}, {s(R_W2, 4)}, {s(sT3)} offen")
        k.vm(f"buffer_load_dwordx4 {a(8 * sl + 4, 4)}, {v(VW2B)}, {s(R_W2, 4)}, {s(sT3)} offen")


def img_dma(k, voff, rs, sbase, stride8, dst, tag):
    k.e(f"s_mul_i32 {s(sT0)}, {s(sWV)}, {14 * stride8}")
    k.e(f"s_add_u32 {s(sT0)}, {s(sT0)}, {s(sbase)}")
    k.e(f"s_mul_i32 {s(sT1)}, {s(sWV)}, 14336")
    for n in range(14):
        if n % 4 == 0:
            k.e(f"s_add_u32 m0, {s(sT1)}, {dst + 1024 * n}")
        if n:
            k.e(f"s_add_u32 {s(sT0)}, {s(sT0)}, {stride8 - 1024 if n % 4 else stride8 + 3072}")
        else:
            k.e("s_nop 0")
        k.vm(f"buffer_load_dwordx4 {v(voff)}, {s(rs, 4)}, {s(sT0)} offen offset:{1024 * (n % 4)} lds", tag)


def half_swz_off(k, dst, stride, flip=None):
    k.e(f"v_lshrrev_b32 {v(VT)}, 2, {v(LANE)}")
    k.e(f"v_lshrrev_b32 {v(VT2)}, 4, {v(LANE)}")
    k.e(f"v_xor_b32 {v(VT)}, {v(VT)}, {v(VT2)}")
    if flip is not None:
        k.e(f"v_xor_b32 {v(VT)}, {s(flip)}, {v(VT)}")
    k.e(f"v_and_b32 {v(VT)}, 1, {v(VT)}")
    k.e(f"v_lshlrev_b32 {v(VT)}, 6, {v(VT)}")
    k.e(f"v_lshl_add_u32 {v(VT)}, {v(TRC)}, 4, {v(VT)}")
    k.e(f"v_lshrrev_b32 {v(VT2)}, 3, {v(LANE)}")
    k.e(f"v_mul_u32_u24 {v(VT2)}, {stride}, {v(VT2)}")
    k.e(f"v_add_u32 {v(dst)}, {v(VT2)}, {v(VT)}")


def tr_half_addr(k, dst, sbase=None, base=0):
    k.e(f"v_lshl_add_u32 {v(VT)}, {v(HF)}, 2, {v(TRR)}")
    k.e(f"v_lshlrev_b32 {v(VT)}, 7, {v(VT)}")
    k.e(f"v_lshrrev_b32 {v(VT2)}, 1, {v(TRR)}")
    k.e(f"v_lshl_add_u32 {v(VT)}, {v(VT2)}, 6, {v(VT)}")
    k.e(f"v_bfe_u32 {v(VT2)}, {v(LANE)}, 4, 1")
    k.e(f"v_lshl_add_u32 {v(VT)}, {v(VT2)}, 5, {v(VT)}")
    k.e(f"v_lshl_add_u32 {v(VT)}, {v(TRC)}, 3, {v(VT)}")
    k.e(f"v_add_u32 {v(dst)}, {s(sbase) if sbase is not None else base}, {v(VT)}")
    k.e(f"v_xor_b32 {v(dst + 1)}, 64, {v(dst)}")


def corr_a(k, dst, c, t):
    k.e(f"v_cvt_pk_bf16_f32 {v(dst + 1)}, {v(c)}, 0")
    k.e(f"v_lshlrev_b32 {v(t)}, 16, {v(dst + 1)}")
    k.e(f"v_sub_f32 {v(t)}, {v(c)}, {v(t)}")
    k.e(f"v_cvt_pk_bf16_f32 {v(dst)}, {v(c)}, {v(t)}")
    k.e(f"v_mov_b32 {v(dst + 2)}, 0")
    k.e(f"v_mov_b32 {v(dst + 3)}, 0")


def prologue(k):
    k.e("s_cmp_ge_u32 s2, 256")
    k.e("s_cbranch_scc1 L_end")
    k.e("s_load_dwordx8 s[4:11], s[0:1], 0")
    k.e("s_load_dwordx8 s[12:19], s[0:1], 40")
    k.e("s_load_dwordx4 s[20:23], s[0:1], 72")
    k.e("s_load_dwordx2 s[24:25], s[0:1], 88")
    k.e(f"s_memrealtime {s(TAG, 2)}")
    k.e("v_and_b32 v1, 63, v0")
    k.e(f"v_lshrrev_b32 {v(VT)}, 6, v0")
    k.e(f"v_readfirstlane_b32 {s(sWV)}, {v(VT)}")
    k.e(f"s_and_b32 {s(sT0)}, s2, 7")
    k.e(f"s_lshr_b32 {s(sT1)}, s2, 3")
    k.e(f"s_lshr_b32 {s(sGA)}, {s(sT0)}, 1")
    k.e(f"s_lshl_b32 {s(sGA)}, {s(sGA)}, 2")
    k.e(f"s_and_b32 {s(sT2)}, {s(sT1)}, 3")
    k.e(f"s_add_u32 {s(sGA)}, {s(sGA)}, {s(sT2)}")
    k.e(f"s_and_b32 {s(sH)}, {s(sT0)}, 1")
    k.e(f"s_lshl_b32 {s(sH)}, {s(sH)}, 3")
    k.e(f"s_lshr_b32 {s(sT2)}, {s(sT1)}, 2")
    k.e(f"s_add_u32 {s(sH)}, {s(sH)}, {s(sT2)}")
    k.e(f"s_lshl_b32 {s(sG)}, {s(sT0)}, 1")
    k.e(f"s_lshr_b32 {s(sT2)}, {s(sT1)}, 4")
    k.e(f"s_add_u32 {s(sG)}, {s(sG)}, {s(sT2)}")
    k.e(f"s_and_b32 {s(sM)}, {s(sT1)}, 15")
    k.e(f"s_add_u32 {s(sT0)}, {s(sH)}, {s(sGA)}")
    k.e(f"s_mul_i32 {s(sT1)}, {s(sT0)}, 37")
    k.e(f"s_lshr_b32 {s(sT1)}, {s(sT1)}, 8")
    k.e(f"s_mul_i32 {s(sT1)}, {s(sT1)}, 7")
    k.e(f"s_sub_u32 {s(sT0)}, {s(sT0)}, {s(sT1)}")
    k.e(f"s_lshl_b32 {s(sC)}, {s(sT0)}, 7")
    for i in range(1, 7):
        k.e(f"s_add_u32 {s(sC + i)}, {s(sC + i - 1)}, 128")
        k.e(f"s_cmp_eq_u32 {s(sC + i)}, 896")
        k.e(f"s_cselect_b32 {s(sC + i)}, 0, {s(sC + i)}")
    k.e(f"v_lshrrev_b32 {v(VT)}, 3, {v(LANE)}")
    k.e(f"v_mul_u32_u24 {v(VXE)}, 896, {v(VT)}")
    k.e(f"v_lshrrev_b32 {v(VT)}, 4, {v(LANE)}")
    k.e(f"v_and_b32 {v(VT2)}, 7, {v(LANE)}")
    k.e(f"v_xor_b32 {v(VT)}, {v(VT)}, {v(VT2)}")
    k.e(f"v_lshl_add_u32 {v(VXE)}, {v(VT)}, 4, {v(VXE)}")
    k.e(f"v_xor_b32 {v(VXO)}, 64, {v(VXE)}")
    k.e(f"v_lshrrev_b32 {v(VT)}, 2, {v(LANE)}")
    k.e(f"v_mul_u32_u24 {v(VW)}, 2688, {v(VT)}")
    k.e(f"v_and_b32 {v(VT)}, 3, {v(LANE)}")
    k.e(f"v_lshlrev_b32 {v(VT)}, 4, {v(VT)}")
    k.e(f"v_min_u32 {v(VT)}, 40, {v(VT)}")
    k.e(f"v_add_u32 {v(VW)}, {v(VW)}, {v(VT)}")
    k.e(f"s_lshl_b32 {s(sXB)}, {s(sGA)}, 2")
    k.e(f"s_add_u32 {s(sXB)}, {s(sXB)}, {s(sWV)}")
    k.e(f"s_mul_i32 {s(sXB)}, {s(sXB)}, 28672")
    k.e(f"s_mul_i32 {s(sWB)}, {s(sH)}, 56")
    k.e(f"s_mul_i32 {s(sT0)}, {s(sWV)}, 43008")
    k.e(f"s_add_u32 {s(sWB)}, {s(sWB)}, {s(sT0)}")
    k.e("s_waitcnt lgkmcnt(0)")
    skip = k.lab("notag")
    k.e(f"s_or_b32 {s(sT0)}, s2, {s(sWV)}")
    k.e(f"s_cmp_lg_u32 {s(sT0)}, 0")
    k.e(f"s_cbranch_scc1 {skip}")
    srd(k, R_M, P_DBG, 256)
    k.e(f"s_or_b32 {s(TAG)}, {s(TAG)}, 1")
    k.e(f"v_mov_b32 {v(VZ)}, 0")
    k.e(f"v_mov_b32 {v(VTAG)}, {s(TAG)}")
    k.e(f"v_mov_b32 {v(VTAG + 1)}, {s(TAG + 1)}")
    k.e("s_mov_b64 exec, 1")
    k.e(f"buffer_store_dwordx2 {v(VTAG, 2)}, {v(VZ)}, {s(R_M, 4)}, 0 offen sc1")
    k.e("s_mov_b64 exec, -1")
    k.label(skip)
    srd(k, R_X, P_X, SZ_ACT)
    srd(k, R_W, P_WQKV, 448 * 2688)


def late_consts(k):
    k.e(f"s_min_u32 {s(sT0)}, {s(sM)}, 13")
    k.e(f"s_cmp_ge_u32 {s(sT0)}, 7")
    k.e(f"s_cselect_b32 {s(sUH)}, 1, 0")
    k.e(f"s_mul_i32 {s(sT1)}, {s(sUH)}, 7")
    k.e(f"s_sub_u32 {s(sCB)}, {s(sT0)}, {s(sT1)}")
    k.e(f"s_lshl_b32 {s(sCB)}, {s(sCB)}, 7")
    k.e(f"s_lshl_b32 {s(sTT0)}, {s(sG)}, 1")
    k.e(f"s_add_u32 {s(sTT0)}, {s(sTT0)}, {s(sUH)}")
    k.e(f"s_lshl_b32 {s(sTT0)}, {s(sTT0)}, 1")
    k.e(f"s_mov_b32 {s(sNB)}, 0")
    k.e(f"s_mov_b32 {s(sRT)}, {RETRY_MAX}")
    k.e(f"s_cmp_lt_u32 {s(sM)}, 14")
    k.e(f"s_cselect_b32 {s(sSZ)}, -1, 0")
    k.e(f"s_and_b32 {s(sT0)}, {s(sSZ)}, {1792 * 896}")
    srd(k, R_W2, P_W2, s(sT0))
    k.e(f"s_lshr_b32 {s(sT0)}, {s(sWV)}, 1")
    k.e(f"s_mul_i32 {s(sT0)}, {s(sT0)}, {56 * 14336}")
    k.e(f"s_add_u32 {s(sT0)}, {s(sT0)}, {s(sCB)}")
    k.e(f"s_and_b32 {s(sT1)}, {s(sWV)}, 1")
    k.e(f"s_mul_i32 {s(sT2)}, {s(sT1)}, {3 * 14336}")
    k.e(f"s_add_u32 {s(sW2)}, {s(sT0)}, {s(sT2)}")
    k.e(f"s_mul_i32 {s(sT2)}, {s(sT1)}, 14336")
    k.e(f"s_add_u32 {s(sW2L)}, {s(sT0)}, {s(sT2)}")
    k.e(f"s_add_u32 {s(sW2L)}, {s(sW2L)}, {6 * 14336}")
    half_swz_off(k, VW2A, 896, flip=sWV)
    k.e(f"v_add_u32 {v(VW2B)}, 7168, {v(VW2A)}")
    k.e(f"v_lshrrev_b32 {v(VFR)}, 4, {v(LANE)}")
    k.e(f"v_lshlrev_b32 {v(VFR)}, 3, {v(VFR)}")
    k.e(f"v_lshlrev_b32 {v(VPO)}, 3, {v(LANE)}")


def x_dma(k, i):
    k.e(f"s_add_u32 {s(sT0)}, {s(sXB)}, {s(sC + i)}")
    k.e(f"s_lshl_b32 {s(sT1)}, {s(sWV)}, 12")
    for j in range(4):
        k.e(f"s_add_u32 m0, {s(sT1)}, {XS[i] + 1024 * j}")
        if j:
            k.e(f"s_add_u32 {s(sT0)}, {s(sT0)}, 7168")
        else:
            k.e("s_nop 0")
        k.vm(f"buffer_load_dwordx4 {v(VXO if j & 1 else VXE)}, {s(R_X, 4)}, {s(sT0)} offen lds", f"x{i}")


def w_dma(k, i, mats, dst, tag):
    k.e(f"s_mul_i32 {s(sT0)}, {s(sC + i)}, 1344")
    k.e(f"s_add_u32 {s(sT0)}, {s(sT0)}, {s(sWB)}")
    k.e(f"s_lshl_b32 {s(sT1)}, {s(sWV)}, 10")
    for n, mat in enumerate(mats):
        k.e(f"s_add_u32 m0, {s(sT1)}, {dst + 4096 * n}")
        k.e(f"s_add_u32 {s(sT2)}, {s(sT0)}, {896 * mat}")
        k.vm(f"buffer_load_dwordx4 {v(VW)}, {s(R_W, 4)}, {s(sT2)} offen lds", tag)


def phase_a(k, hooks):
    LA = OPT["la"]

    def chunk_dma(i):
        x_dma(k, i)
        w_dma(k, i, (1, 2), WA[i], f"c{i}")

    for i in range(LA):
        chunk_dma(i)
    k.stamp("issued")
    srd(k, R_M, P_DBG, 256)
    srd(k, R_WS, P_WS, WS_SIZE)
    k.e(f"v_mov_b32 {v(VZ)}, 0")
    k.e(f"v_lshrrev_b32 {v(HF)}, 5, {v(LANE)}")
    k.e(f"v_and_b32 {v(T32)}, 31, {v(LANE)}")
    k.e(f"v_lshlrev_b32 {v(VL16)}, 4, {v(LANE)}")
    k.e(f"v_bfe_u32 {v(TRR)}, {v(LANE)}, 2, 2")
    k.e(f"v_and_b32 {v(TRC)}, 3, {v(LANE)}")
    k.e(f"s_mul_i32 {s(sT0)}, {s(sH)}, 1568")
    k.e(f"s_add_u32 {s(R_C)}, {s(P_WPHI)}, {s(sT0)}")
    k.e(f"s_addc_u32 {s(R_C + 1)}, {s(P_WPHI + 1)}, 0")
    k.e(f"s_mov_b32 {s(R_C + 2)}, 1568")
    k.e(f"s_mov_b32 {s(R_C + 3)}, 0x20000")
    late_consts(k)

    def wphi_loads():
        k.e(f"v_lshlrev_b32 {v(VT)}, 1, {v(T32)}")
        k.e(f"v_subrev_u32 {v(VT2)}, 4, {v(VT)}")
        k.e(f"v_cmp_le_u32 vcc, 28, {v(T32)}")
        k.e(f"v_cndmask_b32 {v(VT)}, {v(VT)}, {v(VT2)}, vcc")
        k.e(f"v_and_b32 {v(VT2)}, 26, {v(T32)}")
        k.e(f"v_cmp_eq_u32 vcc, 26, {v(VT2)}")
        k.e(f"v_mov_b32 {v(VT2)}, {hex(BIG)}")
        k.e(f"v_cndmask_b32 {v(VT)}, {v(VT)}, {v(VT2)}, vcc")
        k.e(f"v_cmp_eq_u32 vcc, 1, {v(HF)}")
        k.e(f"v_cndmask_b32 {v(VT2)}, {v(VT2)}, {v(VT)}, vcc")
        k.e(f"v_mul_u32_u24 {v(RSTD)}, 224, {v(HF)}")
        k.e(f"v_add_u32 {v(VT)}, {v(VT)}, {v(RSTD)}")
        for sidx in range(2):
            for j in range(8):
                last = sidx == 1 and j >= 4
                row = 16 * sidx + 8 * (j >> 2) + (j & 3)
                k.vm(f"buffer_load_ushort {v(PHR + 8 * sidx + j)}, {v(VT2 if last else VT)}, {s(R_C, 4)}, 0 offen offset:{row * 56}", "wphi")

    k.e(f"v_bfe_u32 {v(VT)}, {v(T32)}, 1, 3")
    k.e(f"v_xor_b32 {v(VT)}, {v(VT)}, {v(HF)}")
    k.e(f"v_lshlrev_b32 {v(VT)}, 4, {v(VT)}")
    k.e(f"v_lshl_add_u32 {v(VT)}, {v(T32)}, 7, {v(VT)}")
    k.e(f"s_lshl_b32 {s(sT0)}, {s(sWV)}, 12")
    k.e(f"s_add_u32 {s(sT0)}, {s(sT0)}, {XS[0]}")
    k.e(f"v_add_u32 {v(XR)}, {s(sT0)}, {v(VT)}")
    for q in range(1, 4):
        k.e(f"v_xor_b32 {v(XR + q)}, {32 * q}, {v(XR)}")
    k.e(f"v_lshl_add_u32 {v(VT)}, {v(HF)}, 3, {v(TRR)}")
    k.e(f"v_lshlrev_b32 {v(VT)}, 6, {v(VT)}")
    k.e(f"v_bfe_u32 {v(VT2)}, {v(LANE)}, 4, 1")
    k.e(f"v_lshl_add_u32 {v(VT)}, {v(VT2)}, 5, {v(VT)}")
    k.e(f"v_lshl_add_u32 {v(WR)}, {v(TRC)}, 3, {v(VT)}")
    k.e(f"v_add_u32 {v(WR)}, {WA[0]}, {v(WR)}")
    k.e(f"s_lshl_b32 {s(sT0)}, {s(sWV)}, 10")
    k.e(f"v_add_u32 {v(WC)}, {s(sT0)}, {v(WR)}")
    for r in range(4):
        k.e(f"v_mov_b32 {v(ONES + r)}, 0x3f803f80")
    k.e(f"v_mov_b32 {v(CORB + 2)}, 0")
    k.e(f"v_mov_b32 {v(CORB + 3)}, 0")
    k.e(f"s_mov_b32 {s(sMK)}, {hex(1 << 24)}")
    k.e(f"s_mov_b32 {s(sMK + 1)}, {hex(1 << 24)}")

    CF, XX = WF + 32, 216
    for i in range(7):
        last = i == 6
        k.wait(vm=f"c{i}")
        k.e("s_barrier")
        k.stamp(f"chunk{i}")
        for q in range(4):
            k.lg(f"ds_read_b128 {v(X + 16 * i + 4 * q, 4)}, {v(XR + q)}", f"xf{q}")
        for n in range(2):
            for t in range(2):
                k.lg(f"{TR} {v(CF + 4 * n + 2 * t, 2)}, {v(WC)} offset:{4096 * n + 256 * t}", f"cf{n}")
        order = [(q, 0) for q in range(4)] + [(q, 1) for q in range(4)]

        def wread(q, n):
            for t in range(2):
                k.lg(f"{TR} {v(WF + 8 * q + 4 * n + 2 * t, 2)}, {v(WR)} offset:{4096 * n + 1024 * q + 256 * t}", f"wf{q}{n}")

        for q in range(3):
            wread(q, 0)
        for q in range(4):
            xq = v(X + 16 * i + 4 * q, 4)
            k.wait(lg=f"xf{q}")
            k.e(f"{M32} {v(XX, 16)}, {xq}, {xq}, {'0' if i == 0 and q == 0 else v(XX, 16)}")
            wread(*order[3 + q])
        k.e(f"{M32} {a(ACS_K, 16)}, {v(ONES, 4)}, {v(CF, 4)}, {'0' if i == 0 else a(ACS_K, 16)}")
        wread(3, 1)
        k.e(f"{M32} {a(ACS_V, 16)}, {v(ONES, 4)}, {v(CF + 4, 4)}, {'0' if i == 0 else a(ACS_V, 16)}")
        if not last:
            for q in range(4):
                k.e(f"v_add_u32 {v(XR + q)}, {hex((XS[i + 1] - XS[i]) & 0xFFFFFFFF)}, {v(XR + q)}")
            k.e(f"v_add_u32 {v(WR)}, {hex((WA[i + 1] - WA[i]) & 0xFFFFFFFF)}, {v(WR)}")
            k.e(f"v_add_u32 {v(WC)}, {hex((WA[i + 1] - WA[i]) & 0xFFFFFFFF)}, {v(WC)}")
        for n in range(2):
            for q in range(4):
                xq = X + 16 * i + 4 * q
                k.wait(lg=f"wf{q}{n}")
                if n == 0:
                    for r in range(4):
                        k.e(f"v_cndmask_b32 {v(WF + 8 * q + r)}, {v(WF + 8 * q + r)}, {v(ONES)}, {s(sMK, 2)}")
                acc = (ACK, ACV)[n]
                k.e(f"{M32} {v(acc, 16)}, {v(WF + 8 * q + 4 * n, 4)}, {v(xq, 4)}, {'0' if i == 0 and q == 0 else v(acc, 16)}")
                if last and n == 0 and q == 1:
                    k.e(f"v_accvgpr_read_b32 {v(VT)}, {a(ACS_K)}")
                    k.e(f"v_accvgpr_read_b32 {v(VT2)}, {a(ACS_V)}")
                    k.e(f"s_lshl_b32 {s(sT0)}, {s(sWV)}, 2")
                    k.e(f"s_add_u32 {s(sT0)}, {s(sT0)}, {L_CS}")
                    k.e(f"v_lshlrev_b32 {v(WC)}, 4, {v(T32)}")
                    k.e(f"v_add_u32 {v(WC)}, {s(sT0)}, {v(WC)}")
                    k.lg(f"ds_write_b32 {v(WC)}, {v(VT)}")
                    k.lg(f"ds_write_b32 {v(WC)}, {v(VT2)} offset:512")
                if last and n == 0 and q == 2:
                    for lv, msk in enumerate((0xAAAAAAAA, 0xCCCCCCCC)):
                        k.e(f"s_mov_b32 {s(sMK)}, {hex(msk)}")
                        k.e(f"s_mov_b32 {s(sMK + 1)}, {hex(msk)}")
                        st = 1 << lv
                        for j in range(0, 16, 2 * st):
                            k.e(f"v_cndmask_b32 {v(XX + j)}, {v(XX + j)}, {v(XX + j + st)}, {s(sMK, 2)}")
                    k.e(f"s_mov_b32 {s(sMK)}, {hex(1 << 24)}")
                    k.e(f"s_mov_b32 {s(sMK + 1)}, {hex(1 << 24)}")
                if last and n == 0 and q == 3:
                    k.wait(lg="all")
                    k.e("s_barrier")
                    k.e(f"v_lshlrev_b32 {v(WC)}, 4, {v(T32)}")
                    k.lg(f"ds_read_b128 {v(CF, 4)}, {v(WC)} offset:{L_CS}", "csk")
                    k.lg(f"ds_read_b128 {v(CF + 4, 4)}, {v(WC)} offset:{L_CS + 512}", "csv")
                    for lv, msk in ((2, 0xFF00FF00), (3, 0xFFFF0000)):
                        k.e(f"s_mov_b32 {s(sMK)}, {hex(msk)}")
                        k.e(f"s_mov_b32 {s(sMK + 1)}, {hex(msk)}")
                        st = 1 << lv
                        for j in range(0, 16, 2 * st):
                            k.e(f"v_cndmask_b32 {v(XX + j)}, {v(XX + j)}, {v(XX + j + st)}, {s(sMK, 2)}")
                    k.e(f"v_mov_b32 {v(Q0)}, {v(XX)}")
                    k.e(f"s_mov_b32 {s(sMK)}, 0xf0f0f0f0")
                    k.e(f"s_mov_b32 {s(sMK + 1)}, 0xf0f0f0f0")
                    k.e(f"v_permlane32_swap_b32 {v(Q0)}, {v(XX)}")
                    k.e(f"v_cndmask_b32 {v(Q0)}, {v(Q0)}, {v(XX)}, {s(sMK, 2)}")
                    k.e(f"v_cmp_gt_u32 vcc, 32, {v(LANE)}")
                if last and n == 1 and q == 0:
                    k.wait(lg="csk")
                    k.e(f"v_add_f32 {v(CF)}, {v(CF)}, {v(CF + 1)}")
                    k.e(f"v_add_f32 {v(CF + 2)}, {v(CF + 2)}, {v(CF + 3)}")
                    k.e(f"v_add_f32 {v(CF)}, {v(CF)}, {v(CF + 2)}")
                    k.e(f"v_cndmask_b32 {v(CF)}, 0, {v(CF)}, vcc")
                    corr_a(k, XX, CF, VT)
                if last and n == 1 and q == 1:
                    k.e(f"v_mov_b32 {v(S0)}, {v(ACK + 12)}")
                    k.e(f"v_mov_b32 {v(S1)}, {v(ACK + 12)}")
                    k.e(f"v_mul_f32 {v(Q0)}, {f32bits(1.0 / 448)}, {v(Q0)}")
                    k.e(f"v_permlane32_swap_b32 {v(S0)}, {v(S1)}")
                    k.e(f"v_mul_f32 {v(S0)}, {f32bits(-1.0 / 448)}, {v(S0)}")
                    k.e(f"v_cvt_pk_bf16_f32 {v(CORB)}, {v(S0)}, {v(S0)}")
                    k.e(f"v_lshlrev_b32 {v(VT)}, 16, {v(CORB)}")
                    k.e(f"v_sub_f32 {v(VT)}, {v(S0)}, {v(VT)}")
                    k.e(f"v_cvt_pk_bf16_f32 {v(CORB + 1)}, {v(VT)}, 0")
                    k.e(f"{M32} {v(ACK, 16)}, {v(XX, 4)}, {v(CORB, 4)}, {v(ACK, 16)}")
                    k.e(f"v_fma_f32 {v(Q0)}, -{v(S0)}, {v(S0)}, {v(Q0)}")
                    k.e(f"v_max_f32 {v(Q0)}, 0, {v(Q0)}")
                    k.e(f"v_add_f32 {v(Q0)}, {f32bits(1e-5)}, {v(Q0)}")
                    k.e(f"v_rsq_f32 {v(RSTD)}, {v(Q0)}")
                if last and n == 1 and q == 2:
                    k.e(f"v_mul_f32 {v(SC)}, {hex(LOG2E)}, {v(RSTD)}")
                    k.wait(lg="csv")
                    k.e(f"v_add_f32 {v(CF + 4)}, {v(CF + 4)}, {v(CF + 5)}")
                    k.e(f"v_add_f32 {v(CF + 6)}, {v(CF + 6)}, {v(CF + 7)}")
                    k.e(f"v_add_f32 {v(CF + 4)}, {v(CF + 4)}, {v(CF + 6)}")
                    k.e(f"v_cndmask_b32 {v(CF + 4)}, 0, {v(CF + 4)}, vcc")
                    corr_a(k, XX + 4, CF + 4, VT)
                if n == 0 and q == 0:
                    if i + LA < 7:
                        chunk_dma(i + LA)
                    hooks(f"a_chunk{i}")
                    if i == OPT["wphi_at"]:
                        wphi_loads()
        if i == 5:
            k.wait(vm="wphi")
            for r in range(8):
                k.e(f"v_lshl_or_b32 {v(WPF + r)}, {v(PHR + 2 * r + 1)}, 16, {v(PHR + 2 * r)}")
    k.e(f"{M32} {v(ACV, 16)}, {v(XX + 4, 4)}, {v(CORB, 4)}, {v(ACV, 16)}")
    k.stamp("gemm")
    KB, VB = 192, 200
    P, EP, EN, OP, ON, T4 = 144, 160, 176, 208, 216, 224
    for i in range(8):
        k.e(f"v_cvt_pk_bf16_f32 {v(KB + i)}, {v(ACK + 2 * i)}, {v(ACK + 2 * i + 1)}")
    k.e(f"{M32} {v(P, 16)}, {v(WPF, 4)}, {v(KB, 4)}, 0")
    k.e(f"{M32} {v(P, 16)}, {v(WPF + 4, 4)}, {v(KB + 4, 4)}, {v(P, 16)}")
    for i in range(0, 16, 2):
        k.e(f"v_pk_mul_f32 {v(ACV + i, 2)}, {v(ACV + i, 2)}, {v(RSTD, 2)} op_sel_hi:[1,0]")
    for i in range(8):
        k.e(f"v_cvt_pk_bf16_f32 {v(VB + i)}, {v(ACV + 2 * i)}, {v(ACV + 2 * i + 1)}")
    k.e(f"v_mov_b32 {v(VT)}, 0x3f80")
    k.e(f"v_cndmask_b32 {v(VB + 6)}, {v(VB + 6)}, {v(VT)}, vcc")
    k.e(f"v_cndmask_b32 {v(VB + 7)}, {v(VB + 7)}, {v(VZ)}, vcc")
    AV, AP = S1, XR
    k.e(f"v_bfe_u32 {v(VT)}, {v(T32)}, 1, 1")
    k.e(f"v_xor_b32 {v(VT)}, {v(VT)}, {v(HF)}")
    k.e(f"v_lshlrev_b32 {v(VT)}, 4, {v(VT)}")
    k.e(f"v_bfe_u32 {v(VT2)}, {v(T32)}, 2, 1")
    k.e(f"v_lshl_add_u32 {v(VT)}, {v(VT2)}, 5, {v(VT)}")
    k.e(f"v_lshl_add_u32 {v(VT)}, {v(T32)}, 6, {v(VT)}")
    k.e(f"s_lshl_b32 {s(sT0)}, {s(sWV)}, 11")
    k.e(f"s_add_u32 {s(sT0)}, {s(sT0)}, {L_V}")
    k.e(f"v_add_u32 {v(AV)}, {s(sT0)}, {v(VT)}")
    k.e(f"v_xor_b32 {v(VT)}, 32, {v(AV)}")
    k.lg(f"ds_write_b128 {v(AV)}, {v(VB, 4)}")
    k.lg(f"ds_write_b128 {v(VT)}, {v(VB + 4, 4)}")
    k.e(f"v_and_b32 {v(VT)}, 1, {v(T32)}")
    k.e(f"v_xor_b32 {v(VT)}, {v(VT)}, {v(HF)}")
    k.e(f"v_lshlrev_b32 {v(VT)}, 4, {v(VT)}")
    k.e(f"v_bfe_u32 {v(VT2)}, {v(T32)}, 1, 2")
    k.e(f"v_lshl_add_u32 {v(VT)}, {v(VT2)}, 5, {v(VT)}")
    k.e(f"v_lshl_add_u32 {v(VT)}, {v(T32)}, 7, {v(VT)}")
    k.e(f"s_lshl_b32 {s(sT0)}, {s(sWV)}, 12")
    k.e(f"v_add_u32 {v(AP)}, {s(sT0)}, {v(VT)}")
    for b in range(1, 4):
        k.e(f"v_xor_b32 {v(AP + b)}, {32 * b}, {v(AP)}")
    softmax_pair(k, P, EP, EN, OP, ON, T4, SC, fill=lambda i: hooks(f"a_sm{i}"))
    for b, r in enumerate((OP, OP + 4, ON, ON + 4)):
        k.lg(f"ds_write_b128 {v(AP + b)}, {v(r, 4)} offset:{L_PHI}")
    RA, RB = XR, XR + 1
    k.e(f"v_lshrrev_b32 {v(VT)}, 2, {v(LANE)}")
    k.e(f"v_lshrrev_b32 {v(VT2)}, 1, {v(TRC)}")
    k.e(f"v_lshlrev_b32 {v(VT2)}, 3, {v(VT2)}")
    k.e(f"v_xor_b32 {v(S0)}, {v(TRC)}, {v(VT)}")
    k.e(f"v_and_b32 {v(S0)}, 1, {v(S0)}")
    k.e(f"v_lshl_add_u32 {v(S0)}, {v(S0)}, 4, {v(VT2)}")
    k.e(f"v_bfe_u32 {v(S1)}, {v(VT)}, 1, 2")
    k.e(f"v_xor_b32 {v(S1)}, {s(sWV)}, {v(S1)}")
    k.e(f"v_lshl_add_u32 {v(S0)}, {v(S1)}, 5, {v(S0)}")
    k.e(f"v_lshl_add_u32 {v(RA)}, {v(VT)}, 7, {v(S0)}")
    k.e(f"v_lshrrev_b32 {v(S0)}, 1, {v(VT)}")
    k.e(f"v_xor_b32 {v(S0)}, {v(TRC)}, {v(S0)}")
    k.e(f"v_and_b32 {v(S0)}, 1, {v(S0)}")
    k.e(f"v_lshl_add_u32 {v(S0)}, {v(S0)}, 4, {v(VT2)}")
    k.e(f"v_bfe_u32 {v(S1)}, {v(VT)}, 2, 1")
    k.e(f"v_lshl_add_u32 {v(S0)}, {v(S1)}, 5, {v(S0)}")
    k.e(f"v_lshl_add_u32 {v(RB)}, {v(VT)}, 6, {v(S0)}")
    k.e(f"v_xor_b32 {v(RB + 1)}, 32, {v(RB)}")
    k.stamp("softmax")
    k.wait(vm="wq", lg="all")
    k.e("s_barrier")
    ok, top = k.lab("tagok"), k.lab("tagw")
    k.e(f"s_mov_b32 {s(sT3)}, {POLL_MAX}")
    k.label(top)
    k.e(f"v_readfirstlane_b32 {s(TAG)}, {v(VTAG)}")
    k.e(f"s_cmp_lg_u32 {s(TAG)}, 0")
    k.e(f"s_cbranch_scc1 {ok}")
    k.e(f"s_sub_u32 {s(sT3)}, {s(sT3)}, 1")
    k.e(f"s_cbranch_scc1 {ok}")
    k.e(f"buffer_load_dword {v(VTAG)}, {v(VZ)}, {s(R_M, 4)}, 0 offen sc1")
    k.e("s_waitcnt vmcnt(0)")
    k.e(f"s_branch {top}")
    k.label(ok)
    FA, FB, KV, KO = 144, 160, 192, 200
    for ks in range(4):
        for t in range(2):
            k.lg(f"{TR} {v(FA + 4 * ks + 2 * t, 2)}, {v(RA)} offset:{L_PHI + 4096 * ks + 2048 * t}")
        for u in range(2):
            for t in range(2):
                k.lg(f"{TR} {v(FB + 8 * ks + 4 * u + 2 * t, 2)}, {v(RB + u)} offset:{L_V + 2048 * ks + 1024 * t}", f"kf{ks}")
        if ks >= 1:
            k.wait(lg=f"kf{ks - 1}")
            for u in range(2):
                k.e(f"{M16} {v(KV + 4 * u, 4)}, {v(FA + 4 * (ks - 1), 4)}, {v(FB + 8 * (ks - 1) + 4 * u, 4)}, {'0' if ks == 1 else v(KV + 4 * u, 4)}")
    k.e(f"s_lshl_b32 {s(sT0)}, {s(sH)}, 2")
    k.e(f"s_add_u32 {s(sT0)}, {s(sT0)}, {s(sWV)}")
    k.e(f"s_lshl_b32 {s(sD)}, {s(sT0)}, 14")
    k.e(f"s_lshl_b32 {s(sT1)}, {s(sGA)}, 10")
    k.e(f"s_add_u32 {s(sT1)}, {s(sT1)}, {s(sD)}")
    k.e(f"s_lshl_b32 {s(sF)}, {s(sT0)}, 9")
    k.e(f"s_add_u32 {s(sF)}, {s(sF)}, {hex(WS_F1)}")
    k.e(f"s_lshl_b32 {s(sT0)}, {s(sGA)}, 5")
    k.e(f"s_add_u32 {s(sT0)}, {s(sT0)}, {s(sF)}")
    k.wait(lg="kf3")
    for u in range(2):
        k.e(f"{M16} {v(KV + 4 * u, 4)}, {v(FA + 12, 4)}, {v(FB + 24 + 4 * u, 4)}, {v(KV + 4 * u, 4)}")
    k.e(f"v_add_u32 {v(WR)}, {hex((L_WQ - WA[6]) & 0xFFFFFFFF)}, {v(WR)}")
    k.e(f"s_lshl_b32 {s(sT2)}, {s(sWV)}, 10")
    k.e(f"v_add_u32 {v(WC)}, {s(sT2)}, {v(WR)}")
    for i in range(4):
        k.e(f"v_cvt_pk_bf16_f32 {v(KO + i)}, {v(KV + 2 * i)}, {v(KV + 2 * i + 1)}")
    k.vm(f"buffer_store_dwordx4 {v(KO, 4)}, {v(VL16)}, {s(R_WS, 4)}, {s(sT1)} offen sc1", "kvst")
    csum(k, VTAG + 1, range(KO, KO + 4))
    row_sum(k, [VTAG + 1])
    record(k, VTAG, VFR, sT0)
    k.stamp("flag1")
    ACQ, QF = 144, 160

    def qread(n, reg, base, off):
        for t in range(2):
            k.lg(f"{TR} {v(reg + 2 * t, 2)}, {v(base)} offset:{off + 256 * t}", n)

    seq = [("c", i) for i in range(7)] + [("m", st) for st in range(28)]
    NB = 8

    def issue(n):
        kind, i = seq[n]
        if kind == "c":
            qread(f"q{n}", QF + 4 * (n % NB), WC, 4096 * i)
        else:
            qread(f"q{n}", QF + 4 * (n % NB), WR, 4096 * (i >> 2) + 1024 * (i & 3))

    AH = 4
    for n in range(AH):
        issue(n)
    for n in range(len(seq)):
        if n + AH < len(seq):
            issue(n + AH)
        k.wait(lg=f"q{n}")
        kind, i = seq[n]
        f = v(QF + 4 * (n % NB), 4)
        if kind == "c":
            k.e(f"{M32} {a(ACS_K, 16)}, {v(ONES, 4)}, {f}, {'0' if i == 0 else a(ACS_K, 16)}")
        else:
            k.e(f"{M32} {v(ACQ, 16)}, {f}, {v(X + 4 * i, 4)}, {'0' if i == 0 else v(ACQ, 16)}")
        if n == 10:
            k.e(f"v_accvgpr_read_b32 {v(VT)}, {a(ACS_K)}")
            k.e(f"s_lshl_b32 {s(sT2)}, {s(sWV)}, 2")
            k.e(f"s_add_u32 {s(sT2)}, {s(sT2)}, {L_CS + 1024}")
            k.e(f"v_lshlrev_b32 {v(VT2)}, 4, {v(T32)}")
            k.e(f"v_add_u32 {v(VT2)}, {s(sT2)}, {v(VT2)}")
            k.lg(f"ds_write_b32 {v(VT2)}, {v(VT)}")
        if n == 24:
            k.e(f"v_lshlrev_b32 {v(VT2)}, 4, {v(T32)}")
            k.e("s_barrier")
            k.lg(f"ds_read_b128 {v(192, 4)}, {v(VT2)} offset:{L_CS + 1024}", "csq")
        hooks(f"q_mm{n}")
        if n == 30:
            k.e(f"v_cmp_gt_u32 vcc, 32, {v(LANE)}")
            k.e(f"v_add_f32 {v(192)}, {v(192)}, {v(193)}")
            k.e(f"v_add_f32 {v(194)}, {v(194)}, {v(195)}")
            k.e(f"v_add_f32 {v(192)}, {v(192)}, {v(194)}")
            k.e(f"v_cndmask_b32 {v(192)}, 0, {v(192)}, vcc")
            corr_a(k, 196, 192, VT)
    k.e(f"{M32} {v(ACQ, 16)}, {v(196, 4)}, {v(CORB, 4)}, {v(ACQ, 16)}")
    for i in range(8):
        k.e(f"v_cvt_pk_bf16_f32 {v(KB + i)}, {v(ACQ + 2 * i)}, {v(ACQ + 2 * i + 1)}")
    k.e(f"{M32} {v(P, 16)}, {v(WPF, 4)}, {v(KB, 4)}, 0")
    k.e(f"{M32} {v(P, 16)}, {v(WPF + 4, 4)}, {v(KB + 4, 4)}, {v(P, 16)}")
    ID = 96
    k.e(f"v_lshlrev_b32 {v(VT)}, 3, {v(HF)}")
    k.e(f"v_sub_u32 {v(VT)}, {v(T32)}, {v(VT)}")
    k.e(f"v_mov_b32 {v(VT2)}, 0x3f80")
    k.e(f"v_mov_b32 {v(S0)}, 0x3f800000")
    for r in range(4):
        k.e(f"v_cmp_eq_u32 vcc, {2 * r}, {v(VT)}")
        k.e(f"v_cndmask_b32 {v(ID + r)}, 0, {v(VT2)}, vcc")
        k.e(f"v_cmp_eq_u32 vcc, {2 * r + 1}, {v(VT)}")
        k.e(f"v_cndmask_b32 {v(ID + r)}, {v(ID + r)}, {v(S0)}, vcc")

    def qfill(i):
        if i == 2:
            poll_issue(k, sF, "p1", VPO)
        hooks(f"q_sm{i}")

    softmax_pair(k, P, EP, EN, OP, ON, T4, SC, fill=qfill)
    k.stamp("qdone")


def phase_b(k, hooks):
    OP, ON, ID, SUM, KF, O, OB, PB, CS = 208, 216, 96, 100, 116, 144, 160, 32, 14
    poll(k, sF, "p1", VPO)
    k.stamp("wait1")
    retry = k.lab("retry_b")
    k.label(retry)
    k.e(f"s_mov_b32 {s(sT1)}, {s(sD)}")
    for p in range(16):
        if p and p % 4 == 0:
            k.e(f"s_add_u32 {s(sT1)}, {s(sT1)}, 4096")
        k.vm(f"buffer_load_dwordx4 {v(PB + 4 * p, 4)}, {v(VL16)}, {s(R_WS, 4)}, {s(sT1)} offen offset:{1024 * (p % 4)} sc1", f"kp{p}")
    hooks("b_loads")
    AW, AO = XR, XR + 1
    k.e(f"v_and_b32 {v(VT2)}, 15, {v(LANE)}")
    k.e(f"v_bfe_u32 {v(VT)}, {v(LANE)}, 4, 1")
    k.e(f"v_lshlrev_b32 {v(VT)}, 9, {v(VT)}")
    k.e(f"v_lshl_add_u32 {v(VT)}, {v(HF)}, 8, {v(VT)}")
    k.e(f"v_lshl_add_u32 {v(VT)}, {v(VT2)}, 4, {v(VT)}")
    k.e(f"s_lshl_b32 {s(sT2)}, {s(sWV)}, 10")
    k.e(f"s_add_u32 {s(sT2)}, {s(sT2)}, {L_KVF}")
    k.e(f"v_add_u32 {v(AW)}, {s(sT2)}, {v(VT)}")
    k.e(f"v_add_u32 {v(AW + 2)}, {L_KVF}, {v(VL16)}")
    k.e(f"v_bfe_u32 {v(VT)}, {v(LANE)}, 4, 1")
    k.e(f"v_lshlrev_b32 {v(AW + 3)}, 8, {v(VT)}")
    k.e(f"v_lshl_add_u32 {v(AW + 3)}, {v(HF)}, 3, {v(AW + 3)}")
    k.e(f"v_lshlrev_b32 {v(VT)}, 14, {v(VT)}")
    k.e(f"v_lshl_add_u32 {v(VT)}, {v(HF)}, 8, {v(VT)}")
    k.e(f"v_lshl_add_u32 {v(AO)}, {v(VT2)}, 4, {v(VT)}")
    for p in range(16):
        k.wait(vm=f"kp{p}")
        k.e(f"{M32} {v(SUM, 16)}, {v(ID, 4)}, {v(PB + 4 * p, 4)}, {'0' if p == 0 else v(SUM, 16)}")
        csum(k, CS, range(PB + 4 * p, PB + 4 * p + 4), p == 0)
    verify(k, CS, [PL], 64, retry)
    k.stamp("kvsum")
    for i in range(4):
        k.e(f"v_cvt_pk_bf16_f32 {v(KF + i)}, {v(SUM + 2 * i)}, {v(SUM + 2 * i + 1)}")
    k.lg(f"ds_write_b128 {v(AW)}, {v(KF, 4)}")
    k.e(f"s_lshl_b32 {s(sT0)}, {s(sGA)}, 2")
    k.e(f"s_add_u32 {s(sT0)}, {s(sT0)}, {s(sWV)}")
    k.e(f"s_lshl_b32 {s(sT1)}, {s(sT0)}, 15")
    k.e(f"s_lshl_b32 {s(sT2)}, {s(sH)}, 10")
    k.e(f"s_add_u32 {s(sT1)}, {s(sT1)}, {s(sT2)}")
    k.e(f"s_add_u32 {s(sT1)}, {s(sT1)}, {hex(WS_O)}")
    k.e(f"s_lshl_b32 {s(sT0)}, {s(sT0)}, 9")
    k.e(f"s_lshl_b32 {s(sT2)}, {s(sH)}, 4")
    k.e(f"s_add_u32 {s(sT0)}, {s(sT0)}, {s(sT2)}")
    k.e(f"s_add_u32 {s(sT0)}, {s(sT0)}, {hex(WS_F2)}")
    k.wait(lg="all")
    k.e("s_barrier")
    for i in range(4):
        k.lg(f"ds_read_b128 {v(KF + 4 * i, 4)}, {v(AW + 2)} offset:{1024 * i}", f"kf{i}")
    for i, r in enumerate((OP, OP + 4, ON, ON + 4)):
        k.wait(lg=f"kf{i}")
        k.e(f"{M32} {v(O, 16)}, {v(KF + 4 * i, 4)}, {v(r, 4)}, {'0' if i == 0 else v(O, 16)}")
    k.e(f"v_cmp_gt_u32 vcc, 32, {v(LANE)}")
    D0, D1 = S0, Q0
    k.e(f"v_mov_b32 {v(D0)}, {v(O + 12)}")
    k.e(f"v_mov_b32 {v(D1)}, {v(O + 12)}")
    k.e(f"v_permlane32_swap_b32 {v(D0)}, {v(D1)}")
    k.e(f"v_add_f32 {v(D0)}, {f32bits(1e-6)}, {v(D0)}")
    k.e(f"v_rcp_f32 {v(D0)}, {v(D0)}")
    k.e(f"v_cndmask_b32 {v(O + 12)}, {v(O + 12)}, {v(VZ)}, vcc")
    for i in range(0, 16, 2):
        k.e(f"v_pk_mul_f32 {v(O + i, 2)}, {v(O + i, 2)}, {v(D0, 2)} op_sel_hi:[1,0]")
    for i in range(8):
        k.e(f"v_cvt_pk_bf16_f32 {v(OB + i)}, {v(O + 2 * i)}, {v(O + 2 * i + 1)}")
    k.vm(f"buffer_store_dwordx4 {v(OB, 4)}, {v(AO)}, {s(R_WS, 4)}, {s(sT1)} offen sc1")
    k.vm(f"buffer_store_dwordx4 {v(OB + 4, 4)}, {v(AO)}, {s(R_WS, 4)}, {s(sT1)} offen offset:512 sc1", "ost")
    csum(k, VTAG + 1, range(OB, OB + 8))
    row_sum(k, [VTAG + 1])
    record(k, VTAG, AW + 3, sT0)
    k.stamp("flag2")


def w1_voff(k, dst):
    half_swz_off(k, dst, 3584)


def phase_c(k, hooks):
    CA1, CA2, VHS, CS, ACC, OF = 10, 16, 14, 15, 224, 32
    slots = [v(r, 4) for r in range(96, 224, 4)] + [v(24, 4), v(28, 4)] + [a(r, 4) for r in range(224, 256, 4)]
    halves = [(lambda r: (lambda t: v(r + 2 * t, 2)))(r) for r in list(range(96, 224, 4)) + [24, 28]]
    halves += [(lambda r: (lambda t: a(r + 2 * t, 2)))(r) for r in range(224, 256, 4)]
    NS = len(slots)
    k.e(f"s_and_b32 {s(sT0)}, {s(sSZ)}, {448 * 3584}")
    srd(k, R_W, P_W1, s(sT0))
    w1_voff(k, 20)
    k.e(f"s_lshl_b32 {s(sD)}, {s(sM)}, 8")
    img_dma(k, 20, R_W, sD, 8 * 3584, L_W1A, "w1a")
    k.e(f"s_lshl_b32 {s(sT0)}, {s(sTT0)}, 1")
    k.e(f"s_add_u32 {s(sT0)}, {s(sT0)}, {s(sWV)}")
    k.e(f"s_lshl_b32 {s(sF)}, {s(sT0)}, 8")
    k.e(f"s_add_u32 {s(sF)}, {s(sF)}, {hex(WS_F2)}")
    k.e(f"s_lshl_b32 {s(sD)}, {s(sT0)}, 14")
    k.e(f"s_add_u32 {s(sD)}, {s(sD)}, {hex(WS_O)}")
    k.e(f"v_lshlrev_b32 {v(VPO)}, 3, {v(T32)}")
    poll_issue(k, sF, "p2", VPO)
    q, u = VT, VT2
    for dst, extra in ((CA1, False), (CA2, True)):
        k.e(f"v_lshlrev_b32 {v(VT)}, 4, {v(HF)}")
        k.e(f"v_bfe_u32 {v(VT2)}, {v(LANE)}, 4, 1")
        k.e(f"v_lshl_add_u32 {v(VT)}, {v(VT2)}, 2, {v(VT)}")
        k.e(f"v_add_u32 {v(VT)}, {v(VT)}, {v(TRR)}")
        if extra:
            k.e(f"v_lshlrev_b32 {v(VT2)}, 2, {v(HF)}")
            k.e(f"v_sub_u32 {v(VT)}, {v(VT)}, {v(VT2)}")
            k.e(f"v_add_u32 {v(VT)}, 8, {v(VT)}")
        k.e(f"v_bfe_u32 {v(VT2)}, {v(VT)}, 1, 2")
        k.e(f"v_lshlrev_b32 {v(VT)}, 7, {v(VT)}")
        k.e(f"v_lshl_add_u32 {v(VT)}, {v(VT2)}, 5, {v(VT)}")
        k.e(f"v_lshl_add_u32 {v(VT)}, {v(TRC)}, 3, {v(VT)}")
        k.e(f"v_add_u32 {v(dst)}, {L_WO}, {v(VT)}")
        for nt in range(1, 4):
            k.e(f"v_xor_b32 {v(dst + nt)}, {32 * nt}, {v(dst)}")
    k.e(f"s_lshl_b32 {s(sT0)}, {s(sWV)}, 13")
    k.e(f"s_add_u32 {s(sT0)}, {s(sT0)}, {L_STG}")
    k.e(f"v_add_u32 {v(VST)}, {s(sT0)}, {v(VL16)}")
    tr_half_addr(k, VTR, sbase=sT0)
    k.e(f"v_and_b32 {v(VT)}, 15, {v(LANE)}")
    k.e(f"v_lshlrev_b32 {v(VT)}, 4, {v(VT)}")
    k.e(f"v_lshl_add_u32 {v(VHS)}, {v(VFR)}, 6, {v(VT)}")

    def wread(n):
        hh, nt = n >> 2, n & 3
        x = nt ^ (2 * (hh & 1))
        k.lg(f"{TR} {halves[n % NS](0)}, {v(CA1 + x)} offset:{3584 * hh}")
        k.lg(f"{TR} {halves[n % NS](1)}, {v(CA2 + x)} offset:{3584 * hh}", f"wo{n}")

    retry = k.lab("retry_c")
    k.label(retry)
    for i in range(8):
        k.e(f"v_lshlrev_b32 {v(ACC + 2 * i)}, 16, {v(XRES + i)}")
        k.e(f"v_and_b32 {v(ACC + 2 * i + 1)}, 0xffff0000, {v(XRES + i)}")
    for n in range(NS):
        wread(n)
    k.stamp("c_pre")
    poll(k, sF, "p2", VPO, lim=OPT["lim2"])
    k.stamp("wait2")
    k.e(f"s_mov_b32 {s(sT1)}, {s(sD)}")
    for hh in range(16):
        if hh and hh % 4 == 0:
            k.e(f"s_add_u32 {s(sT1)}, {s(sT1)}, 4096")
        k.vm(f"buffer_load_dwordx4 {v(OF + 4 * hh, 4)}, {v(VL16)}, {s(R_WS, 4)}, {s(sT1)} offen offset:{1024 * (hh % 4)} sc1", f"of{hh}")
    hooks("c_loads")
    for hh in range(16):
        k.wait(vm=f"of{hh}", lg=f"wo{4 * hh + 3}")
        for nt in range(4):
            n = 4 * hh + nt
            k.e(f"{M16} {v(ACC + 4 * nt, 4)}, {slots[n % NS]}, {v(OF + 4 * hh, 4)}, {v(ACC + 4 * nt, 4)}")
            if nt == 0:
                csum(k, CS, range(OF + 4 * hh, OF + 4 * hh + 4), hh == 0)
        for nt in range(4):
            if 4 * hh + nt + NS < 64:
                wread(4 * hh + nt + NS)
    verify(k, CS, [PL], 32, retry)
    k.stamp("c_mm")
    HB = 32
    k.e(f"s_lshr_b32 {s(sT0)}, {s(sWV)}, 1")
    k.e(f"s_add_u32 {s(sT0)}, {s(sT0)}, {s(sTT0)}")
    k.e(f"s_and_b32 {s(sT3)}, {s(sWV)}, 1")
    k.e(f"s_mul_i32 {s(sT1)}, {s(sT0)}, 28672")
    k.e(f"s_lshl_b32 {s(sT2)}, {s(sCB)}, 5")
    k.e(f"s_add_u32 {s(sT1)}, {s(sT1)}, {s(sT2)}")
    k.e(f"s_lshl_b32 {s(sT2)}, {s(sT3)}, 8")
    k.e(f"s_add_u32 {s(sT1)}, {s(sT1)}, {s(sT2)}")
    k.e(f"s_add_u32 {s(sT1)}, {s(sT1)}, {hex(WS_H)}")
    for i in range(8):
        k.e(f"v_cvt_pk_bf16_f32 {v(HB + i)}, {v(ACC + 2 * i)}, {v(ACC + 2 * i + 1)}")
        if i % 4 == 3:
            k.vm(f"buffer_store_dwordx4 {v(HB + i - 3, 4)}, {v(VHS)}, {s(R_WS, 4)}, {s(sT1)} offen offset:{512 * (i - 3)} sc1")
    csum(k, VTAG + 1, range(HB, HB + 8))
    k.e(f"s_lshl_b32 {s(sT1)}, {s(sT0)}, 9")
    k.e(f"s_mul_i32 {s(sT2)}, {s(sT3)}, 224")
    k.e(f"s_add_u32 {s(sT1)}, {s(sT1)}, {s(sT2)}")
    k.e(f"s_lshr_b32 {s(sT2)}, {s(sCB)}, 2")
    k.e(f"s_add_u32 {s(sT1)}, {s(sT1)}, {s(sT2)}")
    k.e(f"s_add_u32 {s(sT1)}, {s(sT1)}, {hex(WS_F3)}")
    row_sum(k, [VTAG + 1])
    record(k, VTAG, VFR, sT1)
    k.stamp("flag3")
    k.e("s_barrier")
    k.e(f"s_lshl_b32 {s(sD)}, {s(sM)}, 8")
    k.e(f"s_add_u32 {s(sD)}, {s(sD)}, 128")
    k.e(f"s_mov_b32 {s(sF)}, {s(sT0)}")
    img_dma(k, 20, R_W, sD, 8 * 3584, L_W1B, "w1b")
    U, SQ = 40, 56
    for i in range(8):
        k.e(f"v_lshlrev_b32 {v(U + 2 * i)}, 16, {v(HB + i)}")
        k.e(f"v_and_b32 {v(U + 2 * i + 1)}, 0xffff0000, {v(HB + i)}")
    k.e(f"v_pk_add_f32 {v(SQ, 2)}, {v(U, 2)}, {v(U + 2, 2)}")
    k.e(f"v_pk_mul_f32 {v(SQ + 2, 2)}, {v(U, 2)}, {v(U, 2)}")
    k.e(f"v_pk_fma_f32 {v(SQ + 2, 2)}, {v(U + 2, 2)}, {v(U + 2, 2)}, {v(SQ + 2, 2)}")
    for i in range(4, 16, 2):
        k.e(f"v_pk_add_f32 {v(SQ, 2)}, {v(SQ, 2)}, {v(U + i, 2)}")
        k.e(f"v_pk_fma_f32 {v(SQ + 2, 2)}, {v(U + i, 2)}, {v(U + i, 2)}, {v(SQ + 2, 2)}")
    k.e(f"v_add_f32 {v(SQ)}, {v(SQ)}, {v(SQ + 1)}")
    k.e(f"v_add_f32 {v(SQ + 1)}, {v(SQ + 2)}, {v(SQ + 3)}")
    k.e(f"v_permlane32_swap_b32 {v(SQ)}, {v(SQ + 1)}")
    k.e(f"v_add_f32 {v(SQ)}, {v(SQ)}, {v(SQ + 1)}")
    k.e(f"v_mov_b32 {v(SQ + 1)}, {v(SQ)}")
    k.e(f"v_permlane16_swap_b32 {v(SQ)}, {v(SQ + 1)}")
    k.e(f"v_add_f32 {v(SQ)}, {v(SQ)}, {v(SQ + 1)}")
    k.e(f"v_mov_b32 {v(SQ + 1)}, {v(SQ)}")
    k.e(f"v_mov_b32 {v(SQ + 2)}, {v(VTAG)}")
    k.e(f"v_mov_b32 {v(SQ + 3)}, {v(VTAG)}")
    k.e(f"v_permlane32_swap_b32 {v(SQ)}, {v(SQ + 1)}")
    k.e(f"s_lshl_b32 {s(sT1)}, {s(sF)}, 12")
    k.e(f"s_lshl_b32 {s(sT2)}, {s(sCB)}, 2")
    k.e(f"s_add_u32 {s(sT1)}, {s(sT1)}, {s(sT2)}")
    k.e(f"s_and_b32 {s(sT3)}, {s(sWV)}, 1")
    k.e(f"s_lshl_b32 {s(sT2)}, {s(sT3)}, 8")
    k.e(f"s_add_u32 {s(sT1)}, {s(sT1)}, {s(sT2)}")
    k.e(f"s_add_u32 {s(sT1)}, {s(sT1)}, {hex(WS_ST)}")
    k.e(f"v_and_b32 {v(VT)}, 0xff, {v(VHS)}")
    k.vm(f"buffer_store_dwordx4 {v(SQ, 4)}, {v(VT)}, {s(R_WS, 4)}, {s(sT1)} offen sc1")
    k.e(f"s_lshr_b32 {s(sT1)}, {s(sWV)}, 1")
    k.e(f"s_lshl_b32 {s(sT1)}, {s(sT1)}, 12")
    k.e(f"s_add_u32 {s(sT1)}, {s(sT1)}, {s(sT2)}")
    k.e(f"s_add_u32 {s(sT1)}, {s(sT1)}, {L_HRES}")
    k.e(f"v_add_u32 {v(VT)}, {s(sT1)}, {v(VHS)}")
    k.lg(f"ds_write_b128 {v(VT)}, {v(HB, 4)}")
    k.lg(f"ds_write_b128 {v(VT)}, {v(HB + 4, 4)} offset:2048")


def phase_d(k, hooks):
    AD, CS, VB2, CAF, HFR, ACC, WB, CB = 10, 14, 15, 16, 32, 144, 208, 244
    ST = ACC + 48
    k.e(f"s_lshl_b32 {s(sT0)}, {s(sG)}, 2")
    k.e(f"s_add_u32 {s(sT0)}, {s(sT0)}, {s(sWV)}")
    k.e(f"s_lshl_b32 {s(sF)}, {s(sT0)}, 9")
    k.e(f"s_add_u32 {s(sF)}, {s(sF)}, {hex(WS_F3)}")
    k.e(f"s_mul_i32 {s(sD)}, {s(sT0)}, 28672")
    k.e(f"s_add_u32 {s(sD)}, {s(sD)}, {hex(WS_H)}")
    k.e(f"v_min_u32 {v(VPO)}, 55, {v(LANE)}")
    k.e(f"v_lshlrev_b32 {v(VPO)}, 3, {v(VPO)}")
    poll_issue(k, sF, "p3", VPO)
    tr_half_addr(k, AD, base=L_W1A)
    k.e(f"v_add_u32 {v(AD + 2)}, {L_W1B - L_W1A}, {v(AD)}")
    k.e(f"v_add_u32 {v(AD + 3)}, {L_W1B - L_W1A}, {v(AD + 1)}")
    k.e(f"v_mov_b32 {v(CB + 3)}, 0")
    k.wait(vm="w1b")
    k.e("s_barrier")

    def wread(ks, T, reg):
        for sec in range(2):
            k.lg(f"{TR} {v(reg + 2 * sec, 2)}, {v(AD + T)} offset:{4096 * (ks >> 1) + 1024 * (ks & 1) + 2048 * sec}", f"w{ks}_{T}")

    def p1reg(ks, T):
        return WB + 12 * (ks % 3) + 4 * T

    poll(k, sF, "p3", VPO, lim=7)
    k.stamp("wait3")
    retry = k.lab("retry_d")
    k.label(retry)

    def side_loads():
        k.e(f"s_lshl_b32 {s(sT0)}, {s(sG)}, 2")
        k.e(f"s_add_u32 {s(sT0)}, {s(sT0)}, {s(sWV)}")
        k.e(f"s_lshl_b32 {s(sT0)}, {s(sT0)}, 12")
        k.e(f"s_add_u32 {s(sT0)}, {s(sT0)}, {hex(WS_ST)}")
        k.e(f"s_lshl_b32 {s(sT2)}, {s(sM)}, 11")
        k.e(f"s_add_u32 {s(sT2)}, {s(sT2)}, {hex(WS_CA)}")
        k.e(f"v_lshlrev_b32 {v(VT)}, 4, {v(T32)}")
        for i in range(4):
            k.vm(f"buffer_load_dwordx4 {v(ST + 4 * i, 4)}, {v(VL16 if i < 3 else VT)}, {s(R_WS, 4)}, {s(sT0)} offen offset:{1024 * i} sc1")
        for T in range(4):
            k.vm(f"buffer_load_dwordx4 {v(CAF + 4 * T, 4)}, {v(VT)}, {s(R_WS, 4)}, {s(sT2)} offen offset:{512 * T} sc1", "side")

    k.e(f"s_mov_b32 {s(sT1)}, {s(sD)}")
    for ks in range(28):
        if ks and ks % 4 == 0:
            k.e(f"s_add_u32 {s(sT1)}, {s(sT1)}, 4096")
        k.vm(f"buffer_load_dwordx4 {v(HFR + 4 * ks, 4)}, {v(VL16)}, {s(R_WS, 4)}, {s(sT1)} offen offset:{1024 * (ks % 4)} sc1", f"hf{ks}")
        if ks == 1:
            for kk in range(2):
                for T in range(3):
                    wread(kk, T, p1reg(kk, T))
        if ks == OPT["side_at"]:
            side_loads()
    hooks("d_loads")

    def stats():
        top, ok = k.lab("sidew"), k.lab("sideok")
        k.wait(vm="side")
        k.e(f"s_mov_b32 {s(sT3)}, {POLL_MAX}")
        k.label(top)
        k.e(f"v_xor_b32 {v(VT)}, {v(ST + 2)}, {v(VTAG)}")
        for r in [ST + 6, ST + 10, ST + 14] + [CAF + 4 * T + 3 for T in range(4)]:
            k.e(f"v_xor_b32 {v(VT2)}, {v(r)}, {v(VTAG)}")
            k.e(f"v_or_b32 {v(VT)}, {v(VT)}, {v(VT2)}")
        k.e(f"v_cmp_ne_u32 vcc, 0, {v(VT)}")
        k.e(f"s_cbranch_vccz {ok}")
        k.e(f"s_sub_u32 {s(sT3)}, {s(sT3)}, 1")
        k.e(f"s_cbranch_scc1 {ok}")
        nvm, tags = k.nvm, dict(k.vmtag)
        side_loads()
        k.nvm, k.vmtag = nvm, tags
        k.e("s_waitcnt vmcnt(0)")
        k.e(f"s_branch {top}")
        k.label(ok)
        k.e(f"v_cmp_gt_u32 vcc, 32, {v(LANE)}")
        k.e(f"v_cndmask_b32 {v(ST + 12)}, 0, {v(ST + 12)}, vcc")
        k.e(f"v_cndmask_b32 {v(ST + 13)}, 0, {v(ST + 13)}, vcc")
        k.e(f"v_pk_add_f32 {v(ST, 2)}, {v(ST, 2)}, {v(ST + 4, 2)}")
        k.e(f"v_pk_add_f32 {v(ST + 8, 2)}, {v(ST + 8, 2)}, {v(ST + 12, 2)}")
        k.e(f"v_pk_add_f32 {v(ST, 2)}, {v(ST, 2)}, {v(ST + 8, 2)}")
        for T in range(4):
            k.e(f"v_mov_b32 {v(CAF + 4 * T + 3)}, 0")
        S, Q, E, SD = ST, ST + 1, ST + 2, ST + 3
        k.e(f"v_permlane32_swap_b32 {v(S)}, {v(Q)}")
        k.e(f"v_add_f32 {v(S)}, {v(S)}, {v(Q)}")
        k.e(f"v_mov_b32 {v(Q)}, {v(S)}")
        k.e(f"v_permlane32_swap_b32 {v(S)}, {v(Q)}")
        k.e(f"v_mul_f32 {v(S)}, {f32bits(-1.0 / 448)}, {v(S)}")
        k.e(f"v_mul_f32 {v(Q)}, {f32bits(1.0 / 448)}, {v(Q)}")
        k.e(f"v_fma_f32 {v(Q)}, -{v(S)}, {v(S)}, {v(Q)}")
        k.e(f"v_max_f32 {v(Q)}, 0, {v(Q)}")
        k.e(f"v_add_f32 {v(E)}, {f32bits(1e-5)}, {v(Q)}")
        k.e(f"v_sqrt_f32 {v(SD)}, {v(E)}")
        k.e(f"v_rcp_f32 {v(E)}, {v(E)}")
        k.e(f"v_cvt_pk_bf16_f32 {v(CB)}, {v(S)}, {v(S)}")
        k.e(f"v_lshlrev_b32 {v(VT)}, 16, {v(CB)}")
        k.e(f"v_sub_f32 {v(VT)}, {v(S)}, {v(VT)}")
        k.e(f"v_cvt_pk_bf16_f32 {v(CB + 1)}, {v(VT)}, {v(SD)}")
        k.e(f"v_and_b32 {v(VT)}, 0xffff0000, {v(CB + 1)}")
        k.e(f"v_sub_f32 {v(VT)}, {v(SD)}, {v(VT)}")
        k.e(f"v_cvt_pk_bf16_f32 {v(CB + 2)}, {v(VT)}, 0")
        for r in range(3):
            k.e(f"v_cndmask_b32 {v(CB + r)}, 0, {v(CB + r)}, vcc")
        k.e(f"s_lshl_b32 {s(sT0)}, {s(sWV)}, 8")
        k.e(f"s_add_u32 {s(sT0)}, {s(sT0)}, {L_RS}")
        k.e(f"v_lshl_add_u32 {v(VT)}, {v(LANE)}, 2, {s(sT0)}")
        k.lg(f"ds_write_b32 {v(VT)}, {v(E)}")

    P2 = [WB + 4 * i for i in range(9)]
    for ks in range(28):
        k.wait(vm=f"hf{ks}", lg=f"w{ks}_2")
        for T in range(3):
            k.e(f"{M32} {v(ACC + 16 * T, 16)}, {v(p1reg(ks, T), 4)}, {v(HFR + 4 * ks, 4)}, {'0' if ks == 0 else v(ACC + 16 * T, 16)}")
            if ks + 2 < 28:
                wread(ks + 2, T, p1reg(ks + 2, T))
            if T == 0:
                csum(k, CS, range(HFR + 4 * ks, HFR + 4 * ks + 4), ks == 0)
        if ks == OPT["stats_at"]:
            stats()
    base = 3 * (25 % 3)

    def p2reg(ks):
        return P2[(base + ks) % 9]

    for ks in range(3):
        wread(ks, 3, p2reg(ks))
    verify(k, CS, [PL], 56, retry)
    k.stamp("d_p1")
    for ks in range(3, 8):
        wread(ks, 3, p2reg(ks))
    k.e(f"s_lshl_b32 {s(sT0)}, {s(sG)}, 2")
    k.e(f"s_add_u32 {s(sT0)}, {s(sT0)}, {s(sWV)}")
    k.e(f"s_mul_i32 {s(sD)}, {s(sT0)}, 114688")
    k.e(f"s_lshl_b32 {s(sT1)}, {s(sM)}, 13")
    k.e(f"s_add_u32 {s(sD)}, {s(sD)}, {s(sT1)}")
    k.e(f"s_add_u32 {s(sD)}, {s(sD)}, {hex(WS_H1)}")
    k.e(f"s_add_u32 {s(sT2)}, {s(sD)}, 4096")
    k.e(f"s_lshl_b32 {s(sF)}, {s(sG)}, 13")
    k.e(f"s_mul_i32 {s(sT0)}, {s(sWV)}, 448")
    k.e(f"s_add_u32 {s(sF)}, {s(sF)}, {s(sT0)}")
    k.e(f"s_lshl_b32 {s(sT0)}, {s(sM)}, 5")
    k.e(f"s_add_u32 {s(sF)}, {s(sF)}, {s(sT0)}")
    k.e(f"s_add_u32 {s(sF)}, {s(sF)}, {hex(WS_F4)}")
    k.e(f"s_add_u32 {s(sT1)}, {s(sF)}, 4096")
    R2 = PL

    def epilogue(T):
        A = ACC + 16 * T
        ops = []
        for hh in range(2):
            for i in range(8 * hh, 8 * hh + 8):
                ops.append(f"v_max_f32 {v(A + i)}, 0, {v(A + i)}")
            for i in range(8 * hh, 8 * hh + 8, 2):
                ops.append(f"v_pk_mul_f32 {v(A + i, 2)}, {v(A + i, 2)}, {v(A + i, 2)}")
            for i in range(4 * hh, 4 * hh + 4):
                ops.append(f"v_cvt_pk_bf16_f32 {v(A + i)}, {v(A + 2 * i)}, {v(A + 2 * i + 1)}")
            kl = 2 * T + hh
            ops.append(("vm", f"buffer_store_dwordx4 {v(A + 4 * hh, 4)}, {v(VL16)}, {s(R_WS, 4)}, {s(sD if kl < 4 else sT2)} offen offset:{1024 * (kl % 4)} sc1"))
            dst = (VTAG + 1 if kl < 3 else R2 + 1) if kl < 6 else (VTAG + 1 if kl == 6 else R2 + 1)
            r = list(range(A + 4 * hh, A + 4 * hh + 4))
            if kl in (0, 3, 6, 7):
                ops.append(f"v_add_u32 {v(dst)}, {v(r[0])}, {v(r[1])}")
            else:
                ops.append(f"v_add3_u32 {v(dst)}, {v(r[0])}, {v(r[1])}, {v(dst)}")
            ops.append(f"v_add3_u32 {v(dst)}, {v(r[2])}, {v(r[3])}, {v(dst)}")
        return ops

    def emit(op):
        if isinstance(op, tuple):
            if op[0] == "vm":
                k.vm(op[1])
            else:
                op[1]()
        else:
            k.e(op)

    def recs(soff):
        row_sum(k, [VTAG + 1, R2 + 1])
        record(k, VTAG, VFR, soff)
        record(k, R2, VFR, soff, 2048)

    for T in range(3):
        k.e(f"{M32} {v(ACC + 16 * T, 16)}, {v(CAF + 4 * T, 4)}, {v(CB, 4)}, {v(ACC + 16 * T, 16)}")
    k.e(f"v_mov_b32 {v(R2)}, {v(VTAG)}")
    fill = epilogue(0) + epilogue(1) + epilogue(2) + [("fn", lambda: recs(sF)), ("fn", lambda: k.stamp("flag4e"))]
    per = OPT["d_fill"]
    for ks in range(28):
        k.wait(lg=f"w{ks}_3")
        k.e(f"{M32} {v(ACC + 48, 16)}, {v(p2reg(ks), 4)}, {v(HFR + 4 * ks, 4)}, {'0' if ks == 0 else v(ACC + 48, 16)}")
        if ks >= 1 and ks + 7 < 28:
            wread(ks + 7, 3, p2reg(ks + 7))
        for _ in range(per):
            if fill:
                emit(fill.pop(0))
    k.e(f"{M32} {v(ACC + 48, 16)}, {v(CAF + 12, 4)}, {v(CB, 4)}, {v(ACC + 48, 16)}")
    while fill:
        emit(fill.pop(0))
    for op in epilogue(3):
        emit(op)
    recs(sT1)
    k.stamp("flag4l")


def phase_e(k, hooks):
    VH, CS, VB2, HF1, ACC, PL2 = 10, 14, 15, 16, 184, 12
    RES, HR, BF, ON1, XB, RS = 72, 88, 96, 100, 104, 152
    k.e(f"s_lshl_b32 {s(sF)}, {s(sG)}, 13")
    k.e(f"s_and_b32 {s(sT3)}, {s(sWV)}, 1")
    k.e(f"s_lshl_b32 {s(sT0)}, {s(sT3)}, 11")
    k.e(f"s_add_u32 {s(sF)}, {s(sF)}, {s(sT0)}")
    k.e(f"s_mul_i32 {s(sT0)}, {s(sUH)}, 896")
    k.e(f"s_add_u32 {s(sF)}, {s(sF)}, {s(sT0)}")
    k.e(f"s_lshr_b32 {s(sT2)}, {s(sWV)}, 1")
    k.e(f"s_mul_i32 {s(sT0)}, {s(sT2)}, 224")
    k.e(f"s_add_u32 {s(sF)}, {s(sF)}, {s(sT0)}")
    k.e(f"s_add_u32 {s(sF)}, {s(sF)}, {hex(WS_F4)}")
    k.e(f"v_min_u32 {v(VPO)}, 55, {v(LANE)}")
    k.e(f"v_lshlrev_b32 {v(VPO)}, 3, {v(VPO)}")
    k.e(f"v_add_u32 {v(VT)}, 224, {v(VPO)}")
    k.e(f"v_cmp_le_u32 vcc, 28, {v(LANE)}")
    k.e(f"v_cndmask_b32 {v(VPO)}, {v(VPO)}, {v(VT)}, vcc")
    poll_issue(k, sF, "p4", VPO)
    sE, sL, sFL = sW2, sW2L, sSZ
    k.e(f"s_mul_i32 {s(sD)}, {s(sTT0)}, 114688")
    k.e(f"s_mul_i32 {s(sT0)}, {s(sT2)}, 57344")
    k.e(f"s_add_u32 {s(sD)}, {s(sD)}, {s(sT0)}")
    k.e(f"s_add_u32 {s(sD)}, {s(sD)}, {hex(WS_H1)}")
    k.e(f"s_mul_i32 {s(sT0)}, {s(sT3)}, 3072")
    k.e(f"s_add_u32 {s(sE)}, {s(sD)}, {s(sT0)}")
    k.e(f"s_lshl_b32 {s(sT0)}, {s(sT3)}, 10")
    k.e(f"s_add_u32 {s(sL)}, {s(sD)}, {s(sT0)}")
    k.e(f"s_add_u32 {s(sL)}, {s(sL)}, 6144")
    k.e(f"s_add_u32 {s(sFL)}, {s(sF)}, 4096")
    k.e(f"s_mul_i32 {s(sT0)}, {s(sT2)}, 114688")
    k.e(f"v_add_u32 {v(VH)}, {s(sT0)}, {v(VL16)}")
    k.e(f"s_sub_u32 {s(sT0)}, 114688, {s(sT0)}")
    k.e(f"v_add_u32 {v(VH + 1)}, {s(sT0)}, {v(VL16)}")
    srd(k, R_M, P_B2, 896)
    k.e(f"s_lshl_b32 {s(sT0)}, {s(sT3)}, 6")
    k.e(f"s_add_u32 {s(sT0)}, {s(sT0)}, {s(sCB)}")
    k.e(f"v_lshlrev_b32 {v(VT)}, 1, {v(T32)}")
    k.e(f"v_lshl_add_u32 {v(VT)}, {v(HF)}, 30, {v(VT)}")
    k.vm(f"buffer_load_ushort {v(VB2)}, {v(VT)}, {s(R_M, 4)}, {s(sT0)} offen")
    k.wait(lg="all")
    k.e("s_barrier")
    poll(k, sF, "p4", VPO, lim=7)
    k.stamp("wait4")
    retry = k.lab("retry_e")
    k.label(retry)

    def hload(sl, reg):
        if sl < 21:
            if sl % 3 == 0:
                k.e(f"s_add_u32 {s(sT1)}, {s(sE)}, {8192 * (sl // 3)}")
            off = 1024 * (sl % 3)
        else:
            k.e(f"s_add_u32 {s(sT1)}, {s(sL)}, {8192 * (sl - 21)}")
            off = 0
        for u in range(2):
            k.vm(f"buffer_load_dwordx4 {v(reg + 4 * u, 4)}, {v(VH + u)}, {s(R_WS, 4)}, {s(sT1)} offen offset:{off} sc1", f"h1_{sl}")

    LP = OPT["lp_at"]
    for sl in range(21):
        hload(sl, HF1 + 8 * sl)
        if sl == LP - 1:
            poll_issue(k, sFL, "p5", VPO, PL2)
    top, done = k.lab("rest"), k.lab("restd")
    k.label(top)
    k.e(f"s_cmp_ge_u32 {s(sNB)}, 7")
    k.e(f"s_cbranch_scc1 {done}")
    k.e(f"s_call_b64 {s(sLNK, 2)}, L_batch")
    k.e(f"s_branch {top}")
    k.label(done)
    k.stamp("e_rest")

    def mm(sl, reg, vt, first):
        u, nt = vt >> 1, vt & 1
        acc = v(ACC + 16 * vt, 16)
        k.e(f"{M32} {acc}, {a(8 * sl + 4 * nt, 4)}, {v(reg + 4 * u, 4)}, {'0' if first else acc}")

    for sl in range(21):
        k.wait(vm=f"h1_{sl}")
        for vt in range(4):
            mm(sl, HF1 + 8 * sl, vt, sl == 0)
            if vt < 2:
                r = HF1 + 8 * sl + 4 * vt
                csum(k, CS, range(r, r + 4), sl == 0 and vt == 0)
        if sl == LP - 1:
            poll(k, sFL, "p5", VPO, PL2)
            k.stamp("wait5")
            for i in range(7):
                hload(21 + i, HF1 + 8 * i)
        if sl == 15:
            k.e(f"s_lshl_b32 {s(sT0)}, {s(sWV)}, 11")
            k.e(f"s_add_u32 {s(sT0)}, {s(sT0)}, {L_HRES}")
            k.e(f"v_add_u32 {v(VT)}, {s(sT0)}, {v(VL16)}")
            k.lg(f"ds_read_b128 {v(HR, 4)}, {v(VT)}")
            k.lg(f"ds_read_b128 {v(HR + 4, 4)}, {v(VT)} offset:1024", "hr")
            k.e(f"s_lshr_b32 {s(sT0)}, {s(sWV)}, 1")
            k.e(f"s_lshl_b32 {s(sT2)}, {s(sUH)}, 1")
            k.e(f"s_add_u32 {s(sT0)}, {s(sT0)}, {s(sT2)}")
            k.e(f"s_lshl_b32 {s(sT0)}, {s(sT0)}, 8")
            k.e(f"s_add_u32 {s(sT0)}, {s(sT0)}, {L_RS}")
            k.e(f"v_lshl_add_u32 {v(VT)}, {v(LANE)}, 2, {s(sT0)}")
            k.e(f"v_mov_b32 {v(BF)}, {v(VB2)}")
            k.e(f"v_mov_b32 {v(ON1)}, 0x3f80")
            for r in range(1, 4):
                k.e(f"v_mov_b32 {v(BF + r)}, 0")
                k.e(f"v_mov_b32 {v(ON1 + r)}, 0")
        if sl == 16:
            k.wait(lg="hr")
            for e in range(2):
                for d in range(4):
                    i = 4 * e + 8 * (d >> 1) + 2 * (d & 1)
                    k.e(f"v_lshlrev_b32 {v(RES + i)}, 16, {v(HR + 4 * e + d)}")
                    k.e(f"v_and_b32 {v(RES + i + 1)}, 0xffff0000, {v(HR + 4 * e + d)}")
        if sl == 17:
            k.e(f"{M32} {v(RES, 16)}, {v(BF, 4)}, {v(ON1, 4)}, {v(RES, 16)}")
        if sl == 18:
            k.lg(f"ds_read_b32 {v(RS)}, {v(VT)}", "rs")
            for vt in range(1, 4):
                k.e(f"s_xor_b32 {s(sT0)}, {s(sWV)}, {vt}")
                k.e(f"s_mul_i32 {s(sT0)}, {s(sT0)}, 12288")
                k.e(f"s_add_u32 {s(sT0)}, {s(sT0)}, {L_XCH + 4096 * (vt - 1)}")
                k.e(f"v_add_u32 {v(HR + vt)}, {s(sT0)}, {v(VL16)}")
            k.e(f"s_mul_i32 {s(sT0)}, {s(sWV)}, 12288")
            k.e(f"s_add_u32 {s(sT0)}, {s(sT0)}, {L_XCH}")
            k.e(f"v_add_u32 {v(HR)}, {s(sT0)}, {v(VL16)}")
    k.stamp("e_early")
    for n, vt in enumerate((1, 2, 3, 0)):
        for i in range(7):
            if n == 0:
                k.wait(vm=f"h1_{21 + i}")
            mm(21 + i, HF1 + 8 * i, vt, False)
            if n == 0:
                csum(k, CS, range(HF1 + 8 * i, HF1 + 8 * i + 8), False)
            elif 2 <= i < 6:
                pv = (1, 2, 3, 0)[n - 1]
                k.lg(f"ds_write_b128 {v(HR + pv)}, {v(ACC + 16 * pv + 4 * (i - 2), 4)} offset:{1024 * (i - 2)}")
        if n == 0:
            verify(k, CS, [PL, PL2], 56, retry)
        if n == 2:
            srd(k, R_M, P_OUT, SZ_ACT)
            k.e(f"s_lshr_b32 {s(sT0)}, {s(sWV)}, 1")
            k.e(f"s_add_u32 {s(sT0)}, {s(sT0)}, {s(sTT0)}")
            k.e(f"s_mul_i32 {s(sT0)}, {s(sT0)}, 28672")
            k.e(f"s_add_u32 {s(sT0)}, {s(sT0)}, {s(sCB)}")
            k.e(f"s_and_b32 {s(sT1)}, {s(sWV)}, 1")
            k.e(f"s_lshl_b32 {s(sT1)}, {s(sT1)}, 6")
            k.e(f"s_add_u32 {s(sT0)}, {s(sT0)}, {s(sT1)}")
            k.e(f"v_mul_u32_u24 {v(VT)}, 896, {v(T32)}")
            k.e(f"v_lshl_add_u32 {v(VT)}, {v(HF)}, 4, {v(VT)}")
    k.wait(lg="all")
    k.e("s_barrier")
    k.stamp("e_mm")
    for q in range(4):
        for j in range(3):
            k.lg(f"ds_read_b128 {v(XB + 16 * j + 4 * q, 4)}, {v(HR)} offset:{4096 * j + 1024 * q}", f"x{q}")
    for q in range(4):
        k.wait(lg=f"x{q}")
        for i in (4 * q, 4 * q + 2):
            k.e(f"v_pk_add_f32 {v(XB + i, 2)}, {v(XB + i, 2)}, {v(XB + 16 + i, 2)}")
            k.e(f"v_pk_add_f32 {v(ACC + i, 2)}, {v(ACC + i, 2)}, {v(XB + 32 + i, 2)}")
        for i in (4 * q, 4 * q + 2):
            k.e(f"v_pk_add_f32 {v(ACC + i, 2)}, {v(ACC + i, 2)}, {v(XB + i, 2)}")
        for i in (4 * q, 4 * q + 2):
            k.e(f"v_pk_fma_f32 {v(ACC + i, 2)}, {v(ACC + i, 2)}, {v(RS, 2)}, {v(RES + i, 2)} op_sel_hi:[1,0,1]")
        for i in (2 * q, 2 * q + 1):
            k.e(f"v_cvt_pk_bf16_f32 {v(HF1 + i)}, {v(ACC + 2 * i)}, {v(ACC + 2 * i + 1)}")
        if q & 1:
            b = HF1 + 2 * q - 2
            k.e(f"v_permlane32_swap_b32 {v(b)}, {v(b + 2)}")
            k.e(f"v_permlane32_swap_b32 {v(b + 1)}, {v(b + 3)}")
            k.vm(f"buffer_store_dwordx4 {v(b, 4)}, {v(VT)}, {s(R_M, 4)}, {s(sT0)} offen offset:{16 * (q - 1)}")


def batch_code(k):
    k.label("L_batch")
    for b in range(1, 7):
        k.e(f"s_cmp_eq_u32 {s(sNB)}, {b}")
        k.e(f"s_cbranch_scc1 L_batch{b}")
    for b in range(7):
        if b:
            k.label(f"L_batch{b}")
        for r in range(8):
            k.e(f"ds_write_b128 {v(VST)}, {a(32 * b + 4 * r, 4)} offset:{1024 * r}")
        k.e(f"s_add_u32 {s(sNB)}, {s(sNB)}, 1")
        k.e("s_waitcnt lgkmcnt(0)")
        for kl in range(4):
            for nt in range(2):
                for sec in range(2):
                    k.e(f"{TR} {a(32 * b + 8 * kl + 4 * nt + 2 * sec, 2)}, {v(VTR + nt)} offset:{2048 * kl + 1024 * sec}")
        k.e("s_waitcnt lgkmcnt(0)")
        k.e(f"s_setpc_b64 {s(sLNK, 2)}")


def spare_wg(k):
    RAW, ID, D, B1 = 32, 96, 100, 104
    k.label("L_spare")
    k.e(f"s_lshl_b32 {s(sT0)}, {s(sG)}, 1")
    k.e(f"s_add_u32 {s(sT0)}, {s(sT0)}, {s(sM)}")
    k.e(f"s_sub_u32 {s(sT0)}, {s(sT0)}, 14")
    k.e(f"s_lshl_b32 {s(sT0)}, {s(sT0)}, 2")
    k.e(f"s_add_u32 {s(sT0)}, {s(sT0)}, {s(sWV)}")
    k.e(f"s_cmp_ge_u32 {s(sT0)}, 112")
    k.e("s_cbranch_scc1 L_end")
    srd(k, R_W, P_W1, 448 * 3584)
    srd(k, R_M, P_B1, 3584)
    k.e(f"s_lshl_b32 {s(sT1)}, {s(sT0)}, 5")
    k.e(f"v_lshrrev_b32 {v(VT)}, 1, {v(LANE)}")
    k.e(f"v_mul_u32_u24 {v(VT)}, 3584, {v(VT)}")
    k.e(f"v_and_b32 {v(VT2)}, 1, {v(LANE)}")
    k.e(f"v_lshl_add_u32 {v(VT)}, {v(VT2)}, 4, {v(VT)}")
    k.e(f"s_mov_b32 {s(sT2)}, {s(sT1)}")
    for i in range(14):
        if i:
            k.e(f"s_add_u32 {s(sT2)}, {s(sT2)}, {32 * 3584}")
        k.e(f"buffer_load_dwordx4 {v(RAW + 4 * i, 4)}, {v(VT)}, {s(R_W, 4)}, {s(sT2)} offen")
    F = 10
    k.e(f"v_lshlrev_b32 {v(F)}, 3, {v(VT2)}")
    k.e(f"v_bfe_u32 {v(VT)}, {v(LANE)}, 4, 1")
    k.e(f"v_lshl_add_u32 {v(F)}, {v(VT)}, 2, {v(F)}")
    k.e(f"v_bfe_u32 {v(VT)}, {v(LANE)}, 1, 2")
    k.e(f"v_add_u32 {v(F)}, {v(F)}, {v(VT)}")
    k.e(f"v_lshlrev_b32 {v(VT)}, 1, {v(F)}")
    k.e(f"buffer_load_ushort {v(B1)}, {v(VT)}, {s(R_M, 4)}, {s(sT1)} offen")
    k.e(f"v_and_b32 {v(VT)}, 15, {v(LANE)}")
    k.e(f"v_mov_b32 {v(VT2)}, 0x3f80")
    k.e(f"v_mov_b32 {v(F + 1)}, 0x3f800000")
    for r in range(4):
        k.e(f"v_cmp_eq_u32 vcc, {2 * r}, {v(VT)}")
        k.e(f"v_cndmask_b32 {v(ID + r)}, 0, {v(VT2)}, vcc")
        k.e(f"v_cmp_eq_u32 vcc, {2 * r + 1}, {v(VT)}")
        k.e(f"v_cndmask_b32 {v(ID + r)}, {v(ID + r)}, {v(F + 1)}, vcc")
    for i in range(14):
        k.e(f"s_waitcnt vmcnt({14 - i})")
        k.e(f"{M16} {v(D, 4)}, {v(ID, 4)}, {v(RAW + 4 * i, 4)}, {'0' if i == 0 else v(D, 4)}")
    for sh in (2, 4, 8):
        for r in range(4):
            k.e(f"v_add_f32_dpp {v(D + r)}, {v(D + r)}, {v(D + r)} row_ror:{sh} {DPP}")
    for lv, msk in enumerate((0xCCCCCCCC, 0xF0F0F0F0)):
        k.e(f"s_mov_b32 {s(sMK)}, {hex(msk)}")
        k.e(f"s_mov_b32 {s(sMK + 1)}, {hex(msk)}")
        for j in range(0, 4, 2 << lv):
            k.e(f"v_cndmask_b32 {v(D + j)}, {v(D + j)}, {v(D + j + (1 << lv))}, {s(sMK, 2)}")
    G = 108
    k.e(f"v_cvt_pk_bf16_f32 {v(G + 1)}, {v(D)}, 0")
    k.e(f"v_lshlrev_b32 {v(VT)}, 16, {v(G + 1)}")
    k.e(f"v_sub_f32 {v(VT)}, {v(D)}, {v(VT)}")
    k.e(f"v_cvt_pk_bf16_f32 {v(G)}, {v(D)}, {v(VT)}")
    k.e("s_waitcnt vmcnt(0)")
    k.e(f"v_lshl_or_b32 {v(G + 1)}, {v(B1)}, 16, {v(G + 1)}")
    k.e(f"v_mov_b32 {v(G + 2)}, {v(B1)}")
    k.e(f"v_mov_b32 {v(G + 3)}, {v(VTAG)}")
    k.e(f"v_lshlrev_b32 {v(VT)}, 4, {v(F)}")
    k.e(f"s_lshl_b32 {s(sT1)}, {s(sT0)}, 8")
    k.e(f"s_add_u32 {s(sT1)}, {s(sT1)}, {hex(WS_CA)}")
    k.e("s_mov_b64 exec, 0xffffffff")
    k.e(f"buffer_store_dwordx4 {v(G, 4)}, {v(VT)}, {s(R_WS, 4)}, {s(sT1)} offen sc1")
    k.e("s_endpgm")


def stamp_flush(k):
    if not k.prof:
        return
    k.stamp("end")
    k.stamp("rend", True)
    k.e("s_mov_b64 exec, 1")
    if OPT["dbg"]:
        k.e(f"s_lshl_b32 {s(sT0)}, s2, 2")
        k.e(f"s_add_u32 {s(sT0)}, {s(sT0)}, {s(sWV)}")
        k.e(f"s_cmp_lg_u32 {s(sT0)}, {OPT['dbg']}")
        k.e("s_cbranch_scc1 L_end")
        srd(k, R_M, P_DBG, 256)
        want = "chunk0 chunk6 softmax qdone kvsum flag2 wait2 flag3 wait3 d_p1 flag4l wait4 e_rest end".split()
        for n, nm in enumerate(want):
            k.e(f"s_sub_u32 {s(sT0)}, {s(k.STAMP0 + k.stamp_names.index(nm))}, {s(k.STAMP0 + 1)}")
            k.e(f"v_mov_b32 {v(VT)}, {s(sT0)}")
            k.e(f"buffer_store_dword {v(VT)}, {v(VZ)}, {s(R_M, 4)}, 0 offen offset:{8 + 4 * n}")
        return
    srd(k, R_M, P_WS, 0x400000, WS_PROF)
    k.e(f"s_lshl_b32 {s(sT0)}, s2, 2")
    k.e(f"s_add_u32 {s(sT0)}, {s(sT0)}, {s(sWV)}")
    k.e(f"s_lshl_b32 {s(sT0)}, {s(sT0)}, 7")
    for i in range(k.nstamp):
        k.e(f"v_mov_b32 {v(VT)}, {s(k.STAMP0 + i)}")
        k.e(f"buffer_store_dword {v(VT)}, {v(VZ)}, {s(R_M, 4)}, {s(sT0)} offen offset:{4 * i}")
    k.e(f"v_mov_b32 {v(VT)}, {k.nstamp}")
    k.e(f"buffer_store_dword {v(VT)}, {v(VZ)}, {s(R_M, 4)}, {s(sT0)} offen offset:124")


def build(path, prof=False):
    k = MK(NAME + "_kernel", prof)

    def hooks(name):
        if name == "a_chunk4":
            k.vm(f"buffer_load_dword {v(VTAG)}, {v(VZ)}, {s(R_M, 4)}, 0 offen sc1", "tag")
            for i in range(7):
                w_dma(k, i, (0,), L_WQ + 4096 * i, "wq")
        if name == "a_chunk5":
            k.e(f"s_and_b32 {s(sT0)}, {s(sSZ)}, {448 * 896}")
            srd(k, R_C, P_WO, s(sT0))
            k.e(f"v_lshrrev_b32 {v(VT)}, 1, {v(LANE)}")
            k.e(f"v_lshrrev_b32 {v(VT2)}, 4, {v(LANE)}")
            k.e(f"v_xor_b32 {v(VT)}, {v(VT)}, {v(VT2)}")
            k.e(f"v_and_b32 {v(VT)}, 3, {v(VT)}")
            k.e(f"v_lshlrev_b32 {v(VT)}, 5, {v(VT)}")
            k.e(f"v_and_b32 {v(VT2)}, 1, {v(LANE)}")
            k.e(f"v_lshl_add_u32 {v(VT)}, {v(VT2)}, 4, {v(VT)}")
            k.e(f"v_lshrrev_b32 {v(VT2)}, 3, {v(LANE)}")
            k.e(f"v_mul_u32_u24 {v(VT2)}, 896, {v(VT2)}")
            k.e(f"v_add_u32 {v(VXE)}, {v(VT2)}, {v(VT)}")
            img_dma(k, VXE, R_C, sCB, 8 * 896, L_WO, "wo")
            k.e(f"v_and_b32 {v(VT)}, 15, {v(LANE)}")
            k.e(f"v_mul_u32_u24 {v(VT)}, 896, {v(VT)}")
            k.e(f"v_add_u32 {v(VXO)}, {v(VT)}, {v(VFR)}")
            k.e(f"s_lshl_b32 {s(sT0)}, {s(sTT0)}, 1")
            k.e(f"s_add_u32 {s(sT0)}, {s(sT0)}, {s(sWV)}")
            k.e(f"s_mul_i32 {s(sT0)}, {s(sT0)}, 14336")
            k.e(f"s_add_u32 {s(sT0)}, {s(sT0)}, {s(sCB)}")
            for nt in range(4):
                k.vm(f"buffer_load_dwordx2 {v(XRES + 2 * nt, 2)}, {v(VXO)}, {s(R_X, 4)}, {s(sT0)} offen offset:{32 * nt}")
        if name.startswith("a_sm") and 10 <= int(name[4:]) < 22:
            w2_loads(k, int(name[4:]) - 10, int(name[4:]) - 9)
        if name.startswith("q_mm") and int(name[4:]) in (2, 5, 8, 11):
            n = 12 + int(name[4:]) // 3
            w2_loads(k, n, n + 1)
        if name == "b_loads":
            w2_loads(k, 16, 24)
        if name == "c_loads":
            w2_loads(k, 24, 28)

    prologue(k)
    if prof:
        k.stamp("rstart", True)
        k.stamp("start")
    phase_a(k, hooks)
    phase_b(k, hooks)
    k.e(f"s_cmp_ge_u32 {s(sM)}, 14")
    k.e("s_cbranch_scc1 L_spare")
    phase_c(k, hooks)
    if OPT["stop"] >= 2:
        phase_d(k, hooks)
    if OPT["stop"] >= 3:
        phase_e(k, hooks)
    stamp_flush(k)
    k.label("L_end")
    k.e("s_endpgm")
    batch_code(k)
    spare_wg(k)
    ref = open(f"cdna_kernels/{NAME}.s.ref").read().split("\n")
    head = [l for l in ref if l.startswith(";") and "@launch" not in l and "Override launch" not in l
            and "grid=ceil" not in l]
    out = head[:]
    out.append("; @launch grid=(256,1,1) block=(256,1,1) lds=163840")
    out.append('.amdgcn_target "amdgcn-amd-amdhsa--gfx950"')
    out.append(".text")
    out.append(k.text())
    out.append('.section .rodata,"a"')
    k.maxv = 256
    k.maxa = 255
    out.append(k.descriptor())
    open(path, "w").write("\n".join(out))
    if prof:
        open(path + ".stamps", "w").write(" ".join(k.stamp_names))


if __name__ == "__main__":
    for o in sys.argv[2:]:
        if "=" in o:
            OPT[o.split("=")[0]] = int(o.split("=")[1])
    build(sys.argv[1], "prof" in sys.argv[2:])
```
